```python
import torch

def _softmax(x, axis=-1):
    return torch.softmax(x, dim=axis)
def _gelu(x):
    return torch.nn.functional.gelu(x, approximate="tanh")
def _silu(x):
    return torch.nn.functional.silu(x)
def _sigmoid(x):
    return torch.sigmoid(x)
def _layernorm(x, axis=-1, eps=1e-5):
    m = x.mean(dim=axis, keepdim=True)
    v = x.var(dim=axis, keepdim=True, unbiased=False)
    return (x - m) / torch.sqrt(v + eps)
def _scatter_add(tgt, idx, src, axis=0):
    return tgt.clone().index_add_(axis, idx, src)
def _segment_sum(src, seg, n):
    out = torch.zeros((n,) + src.shape[1:], dtype=src.dtype)
    return out.index_add_(0, seg, src)
def _pad(x, pw):
    flat = tuple(v for pair in reversed(pw) for v in pair)
    return torch.nn.functional.pad(x, flat)

kernel_name = 'sequential_preLN__sliding_block__geglu_ffn__prompt'

def setup_inputs():

    _w = (lambda a: (lambda t: t.to(torch.bfloat16) if t.is_floating_point() else t)(torch.as_tensor(a)))
    def _A_setup():
        B, S, D = 1, 2048, 640
        return {
            "x": _w((lambda *s: torch.randn(*s, dtype=torch.bfloat16) * 0.05)(B, S, D)),
            "wqkv": _w((lambda *s: torch.randn(*s, dtype=torch.bfloat16) * 0.05)(D, 3 * D)),
            "wo": _w((lambda *s: torch.randn(*s, dtype=torch.bfloat16) * 0.05)(D, D)),
        }
    _A_in = _A_setup()

    def _B_setup():
        B, S, D, F = 1, 2048, 640, 1728
        return {
            "x": _w((lambda *s: torch.randn(*s, dtype=torch.bfloat16) * 0.05)(B, S, D)),
            "w_gate": _w((lambda *s: torch.randn(*s, dtype=torch.bfloat16) * 0.05)(D, F)),
            "w_up": _w((lambda *s: torch.randn(*s, dtype=torch.bfloat16) * 0.05)(D, F)),
            "w_down": _w((lambda *s: torch.randn(*s, dtype=torch.bfloat16) * 0.05)(F, D)),
        }
    _B_in = _B_setup()

    return {
        "A_x": _A_in["x"],
        "A_wqkv": _A_in["wqkv"],
        "A_wo": _A_in["wo"],
        "B_x": _B_in["x"],
        "B_w_gate": _B_in["w_gate"],
        "B_w_up": _B_in["w_up"],
        "B_w_down": _B_in["w_down"],
    }

def reference(A_x, A_wqkv, A_wo, B_x, B_w_gate, B_w_up, B_w_down):
    def _A_ref(x, wqkv, wo):
        B, S, D = x.shape
        H = 32; Dh = D // H; W = 256
        qkv = (lambda x, *d: x.permute(*d))((x @ wqkv).reshape(B, S, 3, H, Dh), 2, 0, 3, 1, 4)
        q, k, v = qkv[0], qkv[1], qkv[2]
        scores = torch.einsum("bhqd,bhkd->bhqk", q, k) * (Dh ** -0.5)
        idx = torch.arange(S)
        mask = (idx[:, None] - idx[None, :] >= 0) & (idx[:, None] - idx[None, :] < W)
        scores = torch.where(mask[None, None], scores, -1e9)
        p = _softmax(scores, axis=-1)
        o = torch.einsum("bhqk,bhkd->bhqd", p, v)
        return (lambda x, *d: x.permute(*d))(o, 0, 2, 1, 3).reshape(B, S, D) @ wo

    def _B_ref(x, w_gate, w_up, w_down):
        return (_gelu(x @ w_gate) * (x @ w_up)) @ w_down

    x = A_x
    h = x + _A_ref(_layernorm(x, axis=-1), A_wqkv, A_wo)
    h2 = h + _B_ref(_layernorm(h, axis=-1), B_w_gate, B_w_up, B_w_down)
    return h2
```

```python
class Asm:
    def __init__(self):
        self.L = []
    def __call__(self, s):
        for line in s.strip('\n').split('\n'):
            line = line.strip()
            if line:
                self.L.append("    " + line)
    def label(self, l):
        self.L.append(l + ":")
    def raw(self, s):
        self.L.append(s)
    def nop(self, n):
        while n > 0:
            k = min(n, 16)
            self(f"s_nop {k-1}")
            n -= k
    def text(self):
        return "\n".join(self.L) + "\n"

def vr(b, n=1):
    return f"v{b}" if n == 1 else f"v[{b}:{b+n-1}]"
def sr(b, n=1):
    return f"s{b}" if n == 1 else f"s[{b}:{b+n-1}]"

def kernel_begin(a, name):
    a.raw(f".globl {name}\n.p2align 8\n.type {name},@function\n{name}:")

def kernel_desc(name, vgpr, sgpr=96, accum=None):
    accum = accum if accum is not None else min(256, (vgpr + 3) // 4 * 4)
    return f""".p2align 6
.amdhsa_kernel {name}
  .amdhsa_next_free_vgpr {vgpr}
  .amdhsa_next_free_sgpr {sgpr}
  .amdhsa_accum_offset {accum}
  .amdhsa_group_segment_fixed_size 0
  .amdhsa_kernarg_size 80
  .amdhsa_user_sgpr_count 2
  .amdhsa_user_sgpr_kernarg_segment_ptr 1
  .amdhsa_system_sgpr_workgroup_id_x 1
.end_amdhsa_kernel
"""

def srd(a, d, base_lo, base_hi, nrec, off=None):
    if off is None:
        a(f"s_mov_b32 s{d}, s{base_lo}")
        a(f"s_mov_b32 s{d+1}, s{base_hi}")
    else:
        a(f"s_add_u32 s{d}, s{base_lo}, {off}")
        a(f"s_addc_u32 s{d+1}, s{base_hi}, 0")
    a(f"s_mov_b32 s{d+2}, {nrec}")
    a(f"s_mov_b32 s{d+3}, 0x00020000")
```

```python
from asmlib import *
from gen import *

def gen_k2(a):
    kernel_begin(a, "attn_kernel")
    a("s_cmp_ge_u32 s2, 256")
    a("s_cbranch_scc1 L_k2_done")
    a("s_load_dwordx2 s[12:13], s[0:1], 72")
    a("""
    s_and_b32 s4, s2, 7
    s_lshl_b32 s4, s4, 2
    s_bfe_u32 s5, s2, 0x20003      ; (id>>3)&3
    s_add_u32 s4, s4, s5           ; h
    s_lshr_b32 s5, s2, 5           ; qb
    s_lshr_b32 s6, s4, 1           ; p
    s_and_b32 s7, s4, 1            ; odd
    v_lshrrev_b32 v1, 6, v0
    v_and_b32 v0, 63, v0
    v_readfirstlane_b32 s8, v1     ; wave
    """)
    RK0, RK1, RV = 2, 3, 4
    DV = 5
    Q0, Q1 = 8, 12
    KB = [16, 24, 32]
    VB = [40, 44, 48, 52]
    M = 56
    P8 = 64
    T = 72
    S = 96
    O = 240
    a("s_mul_i32 s9, s7, 1536")
    for i in range(3):
        a(f"""
        v_add_u32 v{T}, {64*i}, v0
        v_cmp_le_u32 vcc, 96, v{T}
        v_subrev_u32 v{T+1}, 96, v{T}
        v_mov_b32 v{T+6}, 0x1e000
        v_cndmask_b32 v{T}, v{T}, v{T+1}, vcc      ; rem
        v_cndmask_b32 v{T+2}, 0, v{T+6}, vcc       ; tile2*122880
        v_mul_u32_u24 v{T+1}, 43, v{T}
        v_lshrrev_b32 v{T+1}, 9, v{T+1}            ; tg
        v_mul_u32_u24 v{T+3}, 12, v{T+1}
        v_sub_u32 v{T+3}, v{T}, v{T+3}             ; rem%12
        v_lshrrev_b32 v{T+4}, 2, v{T+3}            ; u'
        v_and_b32 v{T+3}, 3, v{T+3}                ; t3
        v_lshl_add_u32 v{T+3}, v{T+1}, 2, v{T+3}   ; t
        v_lshl_add_u32 v{T+2}, v{T+3}, 4, v{T+2}
        v_cmp_eq_u32 vcc, 2, v{T+4}
        v_lshlrev_b32 v{T+4}, 9, v{T+4}
        v_add_u32 v{T+5}, s9, v{T+4}
        v_cndmask_b32 v{T+4}, v{T+5}, v{T+4}, vcc
        v_add_u32 v{DV+i}, v{T+2}, v{T+4}
        """)
    a(f"""
    s_lshl_b32 s10, s5, 3          ; 8qb
    s_lshl_b32 s11, s8, 1          ; 2w
    s_add_u32 s14, s10, s11
    s_sub_u32 s15, s14, 8
    s_cmp_lt_u32 s14, 8
    s_cselect_b32 s14, s14, s15
    s_mul_i32 s14, s14, 122880
    s_mul_i32 s15, s6, 2560        ; 5p*512
    s_add_u32 s14, s14, s15
    s_add_u32 s16, s14, {80*512}   ; K
    s_add_u32 s17, s14, {160*512}  ; V
    s_mul_i32 s18, s8, 3072
    s_add_u32 s19, s10, s8         ; T
    s_waitcnt lgkmcnt(0)
    """)
    srd(a, 20, 12, 13, 64*122880, None)
    srd(a, 24, 12, 13, 128*20480, WS_O)
    for i in range(3):
        a(f"s_add_u32 m0, s18, {i*1024}")
        a("s_nop 0")
        a(f"buffer_load_dwordx4 v{DV+i}, s[20:23], s16 offen lds")
    a(f"""
    s_mul_i32 s28, s19, 122880
    s_add_u32 s28, s28, s15        ; + 5p*512
    s_add_u32 s29, s28, s9         ; + odd*1536
    s_lshl_b32 s30, s7, 3
    s_add_u32 s28, s28, s30
    s_add_u32 s28, s28, 1024
    v_lshlrev_b32 v{T}, 4, v0
    v_cmp_gt_u32 vcc, 32, v0
    v_mov_b32 v{T+1}, {BIG}
    buffer_load_dwordx4 {vr(Q0,4)}, v{T}, s[20:23], s29 offen
    v_cndmask_b32 v{T+1}, v{T+1}, v{T}, vcc
    buffer_load_dwordx2 {vr(Q1,2)}, v{T+1}, s[20:23], s28 offen
    """)
    for i in range(3):
        a(f"s_add_u32 m0, s18, {24576+i*1024}")
        a("s_nop 0")
        a(f"buffer_load_dwordx4 v{DV+i}, s[20:23], s17 offen lds")
    a(f"""
    v_mov_b32 v{T+4}, 0x3F803F80
    v_mov_b32 v{T+5}, 0x3F803F80
    v_mov_b32 v{T+6}, 0x3F803F80
    v_mov_b32 v{T+7}, 0x3F803F80
    s_lshl_b32 s30, s8, 11
    v_add_u32 v{T+1}, s30, v{T}
    ds_write_b128 v{T+1}, {vr(T+4,4)} offset:49152
    ds_write_b128 v{T+1}, {vr(T+4,4)} offset:50176
    v_mov_b32 v{Q1+2}, 0
    v_mov_b32 v{Q1+3}, 0
    """)
    for kb in KB:
        a(f"v_mov_b32 v{kb+6}, 0")
        a(f"v_mov_b32 v{kb+7}, 0")
    a(f"""
    v_and_b32 v{T}, 31, v0          ; t
    v_lshrrev_b32 v{T+1}, 5, v0     ; hh
    v_lshrrev_b32 v{T+2}, 2, v{T}
    v_mul_u32_u24 v{T+2}, 192, v{T+2}
    v_and_b32 v{T+3}, 3, v0
    v_lshl_add_u32 v{T+2}, v{T+3}, 4, v{T+2}
    s_mul_i32 s30, s8, 1536
    v_add_u32 v{T+2}, s30, v{T+2}
    v_lshl_add_u32 v{RK0}, v{T+1}, 6, v{T+2}
    s_lshl_b32 s31, s7, 3
    s_add_u32 s31, s31, 128
    v_add_u32 v{RK1}, s31, v{T+2}
    ; V: lane: G&1, r, c
    v_bfe_u32 v{T+4}, v0, 2, 2      ; r
    v_mul_u32_u24 v{T+5}, 192, v{T+1}
    v_lshl_add_u32 v{T+5}, v{T+4}, 4, v{T+5}
    s_add_u32 s30, s30, 24576
    v_add_u32 v{T+5}, s30, v{T+5}
    v_lshrrev_b32 v{T+6}, 1, v{T+3}
    v_lshlrev_b32 v{T+6}, 6, v{T+6}
    v_and_b32 v{T+7}, 1, v{T+3}
    v_lshl_add_u32 v{T+6}, v{T+7}, 3, v{T+6}
    v_add_u32 v{T+6}, v{T+5}, v{T+6}     ; G&1==0 address
    v_add_u32 v{T+7}, s31, v{T+5}        ; s4 address
    v_mov_b32 v{T+8}, 49152
    v_cmp_eq_u32 vcc, 0, v{T+3}
    v_bfe_u32 v{T+9}, v0, 4, 1
    s_nop 0
    v_cndmask_b32 v{T+7}, v{T+8}, v{T+7}, vcc
    v_cmp_eq_u32 vcc, 0, v{T+9}
    v_lshlrev_b32 v{T+10}, 2, v{T+1}
    v_sub_u32 v{T+10}, v{T}, v{T+10}
    v_cndmask_b32 v{RV}, v{T+7}, v{T+6}, vcc
    """)
    for r in range(16):
        cr = 8*(r//4) + r % 4
        a(f"v_cmp_gt_i32 s[{32+2*r}:{33+2*r}], {cr}, v{T+10}")
    a(f"v_mov_b32 v{T}, 0xffff")
    a(f"v_mov_b32 v{T+1}, 0xffff0000")
    for k in range(8):
        a(f"v_cndmask_b32 v{M+k}, 0, v{T}, s[{32+4*k}:{33+4*k}]")
        a(f"v_cndmask_b32 v{T+2}, 0, v{T+1}, s[{34+4*k}:{35+4*k}]")
        a(f"v_or_b32 v{M+k}, v{M+k}, v{T+2}")
    for j in range(9):
        a(f"s_add_u32 s30, s19, {j}")
        a(f"s_cmp_lt_u32 s30, 8")
        a(f"s_cselect_b32 s30, 0xf149f2ca, 0")
        for r in range(16):
            a(f"v_mov_b32 v{S+16*j+r}, s30")
    for r in range(16):
        a(f"v_mov_b32 v{O+r}, 0")
    a("s_mov_b32 s64, 0x3ea52b5b   ; c = 20^-0.5 * log2(e)")
    C = (20 ** -0.5) * 1.4426950408889634
    import struct
    cbits = struct.unpack('<I', struct.pack('<f', C))[0]
    a.L[-1] = f"    s_mov_b32 s64, {cbits:#x}"
    a(f"s_mov_b32 s65, {cbits:#x}")
    a("s_waitcnt vmcnt(0) lgkmcnt(0)")
    a("s_barrier")
    order = [0, 8, 1, 2, 3, 4, 5, 6, 7]
    def kread(n):
        j = order[n]; kb = KB[n % 3]
        a(f"ds_read_b128 {vr(kb,4)}, v{RK0} offset:{j*1536}")
        a(f"ds_read_b64 {vr(kb+4,2)}, v{RK1} offset:{j*1536}")
    MX = T
    def maxtile(j, first):
        sb = S + 16*j
        for k in range(8):
            if first and k == 0:
                a(f"v_max_f32 v{MX}, v{sb}, v{sb+1}")
            else:
                a(f"v_max3_f32 v{MX}, v{sb+2*k}, v{sb+2*k+1}, v{MX}")
    for n in range(3): kread(n)
    for n in range(9):
        j = order[n]; kb = KB[n % 3]; sb = S + 16*j
        outstanding = min(2, 8-n) * 2
        a(f"s_waitcnt lgkmcnt({outstanding})")
        a(f"v_mfma_f32_32x32x16_bf16 {vr(sb,16)}, {vr(kb,4)}, {vr(Q0,4)}, {vr(sb,16)}")
        a(f"v_mfma_f32_32x32x16_bf16 {vr(sb,16)}, {vr(kb+4,4)}, {vr(Q1,4)}, {vr(sb,16)}")
        if n + 3 < 9: kread(n+3)
        if n == 4:
            for r in range(16):
                a(f"v_cndmask_b32 v{S+r}, v{S+128+r}, v{S+r}, s[{32+2*r}:{33+2*r}]")
        if n == 5: maxtile(0, True); maxtile(1, False)
        if n >= 6: maxtile(order[n-3], False)
    def vread(j, s, vb):
        for e in range(2):
            a(f"ds_read_b64_tr_b16 {vr(vb+2*e,2)}, v{RV} offset:{j*1536 + (4*s+2*e)*192}")
    vread(1, 0, VB[0]); vread(1, 1, VB[1])
    maxtile(5, False)
    maxtile(6, False)
    a.nop(4)
    maxtile(7, False)
    a(f"""
    v_mov_b32 v{MX+1}, v{MX}
    s_nop 1
    v_permlane32_swap_b32 v{MX}, v{MX+1}
    s_nop 1
    v_max_f32 v{MX}, v{MX}, v{MX+1}
    v_mul_f32 v{MX+2}, s64, v{MX}
    v_sub_f32 v{MX+2}, 0, v{MX+2}     ; -m*c
    """)
    NM = MX + 2
    def pv(j, pb, vbs):
        return [f"v_mfma_f32_32x32x16_bf16 {vr(O,16)}, {vr(vbs[s],4)}, {vr(pb+4*s,4)}, {vr(O,16)}" for s in range(2)]
    torder = [1, 2, 3, 4, 5, 6, 7, 0]
    pend = None
    for n, j in enumerate(torder):
        sb = S + 16*j
        nxt = torder[n+1] if n+1 < 8 else 8
        vbn = [VB[2*((n+1) % 2)], VB[2*((n+1) % 2)+1]]
        for k in range(8):
            a(f"v_pk_fma_f32 {vr(sb+2*k,2)}, {vr(sb+2*k,2)}, s[64:65], {vr(NM,2)} op_sel_hi:[1,1,0]")
        if pend:
            a("s_waitcnt lgkmcnt(4)" if False else "s_waitcnt lgkmcnt(0)")
            a(pend[0])
        for r in range(8):
            a(f"v_exp_f32 v{sb+r}, v{sb+r}")
        if pend:
            a(pend[1])
        vread(nxt, 0, vbn[0]) if not pend else None
        for r in range(8, 16):
            a(f"v_exp_f32 v{sb+r}, v{sb+r}")
        if pend:
            vread(nxt, 0, vbn[0])
        vread(nxt, 1, vbn[1])
        for k in range(8):
            a(f"v_cvt_pk_bf16_f32 v{sb+k}, v{sb+2*k}, v{sb+2*k+1}")
        vbc = [VB[2*(n % 2)], VB[2*(n % 2)+1]]
        if j == 0:
            for k in range(8):
                a(f"v_bfi_b32 v{P8+k}, v{M+k}, 0, v{sb+k}")
                a(f"v_and_b32 v{sb+k}, v{M+k}, v{sb+k}")
        pend = pv(j, sb, vbc)
    a("s_nop 1")
    a("s_waitcnt lgkmcnt(0)")
    for s in pend: a(s)
    for s in pv(8, P8, [VB[0], VB[1]]): a(s)
    a(f"""
    v_bfe_u32 v{T+4}, v0, 4, 1        ; q>>4
    s_lshl_b32 s30, s19, 1
    v_add_u32 v{T+4}, s30, v{T+4}     ; T16
    v_mul_u32_u24 v{T+4}, 20480, v{T+4}
    v_and_b32 v{T+5}, 15, v0
    v_lshl_add_u32 v{T+4}, v{T+5}, 4, v{T+4}
    v_lshrrev_b32 v{T+5}, 5, v0
    v_lshl_add_u32 v{T+5}, v{T+5}, 8, v{T+4}     ; + hh*256
    v_cmp_gt_u32 vcc, 32, v0
    v_mov_b32 v{T+6}, {BIG}
    s_lshr_b32 s30, s6, 2
    s_mul_i32 s30, s30, 5
    v_cndmask_b32 v{T+4}, v{T+6}, v{T+4}, vcc
    s_and_b32 s31, s6, 3
    s_add_u32 s31, s30, s31
    s_lshl_b32 s31, s31, 10          ; ksA*1024
    s_lshl_b32 s28, s7, 9
    s_add_u32 s31, s31, s28          ; + odd*512
    s_add_u32 s30, s30, 4
    s_lshl_b32 s30, s30, 10          ; ksB*1024
    s_and_b32 s28, s4, 3
    s_lshl_b32 s28, s28, 8
    s_add_u32 s30, s30, s28
    s_bfe_u32 s28, s4, 0x10002
    s_lshl_b32 s28, s28, 3
    s_add_u32 s30, s30, s28
    """)
    a.nop(8)
    a(f"v_rcp_f32 v{T+8}, v{O+12}")
    a("s_nop 0")
    for r in range(12):
        a(f"v_mul_f32 v{O+r}, v{O+r}, v{T+8}")
    for k in range(6):
        a(f"v_cvt_pk_bf16_f32 v{T+12+k}, v{O+2*k}, v{O+2*k+1}")
    a(f"buffer_store_dwordx4 {vr(T+12,4)}, v{T+5}, s[24:27], s31 offen")
    a(f"buffer_store_dwordx2 {vr(T+16,2)}, v{T+4}, s[24:27], s30 offen")
    a.label("L_k2_done")
    a("s_endpgm")
    return kernel_desc("attn_kernel", 256, 80)
```

```python
from asmlib import *
from gen import *

def decode_64x80(a):
    a("""
    s_and_b32 s14, s2, 7
    s_lshr_b32 s15, s2, 3
    s_lshr_b32 s16, s14, 1
    s_lshl_b32 s16, s16, 3
    s_and_b32 s17, s15, 7
    s_add_u32 s16, s16, s17        ; mt
    s_and_b32 s17, s14, 1
    s_lshl_b32 s17, s17, 2
    s_lshr_b32 s18, s15, 3
    s_add_u32 s17, s17, s18        ; nt
    v_lshrrev_b32 v1, 6, v0
    v_and_b32 v0, 63, v0
    v_readfirstlane_b32 s19, v1
    """)

def write_partials(a, ACC, T, th, kh):
    a(f"""
    v_and_b32 v{T}, 15, v0
    s_lshl_b32 s14, s{th}, 5
    v_add_u32 v{T}, s14, v{T}
    v_mul_u32_u24 v{T}, 336, v{T}
    v_lshrrev_b32 v{T+1}, 4, v0
    v_lshl_add_u32 v{T}, v{T+1}, 4, v{T}
    s_mul_i32 s14, s{kh}, 21504
    v_add_u32 v{T}, s14, v{T}
    s_barrier
    """)
    for ft in range(5):
        for tt in range(2):
            a(f"ds_write_b128 v{T}, {vr(ACC+(ft*2+tt)*4,4)} offset:{tt*16*336 + ft*64}")
    a("s_waitcnt lgkmcnt(0)")
    a("s_barrier")

def gen_k3(a):
    kernel_begin(a, "wo_kernel")
    a("s_cmp_ge_u32 s2, 256")
    a("s_cbranch_scc1 L_k3_done")
    a("s_load_dwordx2 s[4:5], s[0:1], 0")
    a("s_load_dwordx2 s[6:7], s[0:1], 16")
    a("s_load_dwordx2 s[12:13], s[0:1], 72")
    decode_64x80(a)
    DV = 2
    RA, RB = 8, 9
    VL = 10
    T = 12
    XR = 24
    ACC = 40
    WF = [80, 100]
    OF = 128
    a("""
    s_and_b32 s40, s19, 1
    s_lshr_b32 s41, s19, 1         ; kh
    """)
    a(f"v_lshlrev_b32 v{VL}, 4, v0")
    a("s_lshl_b32 s14, s41, 6")
    a("s_mul_i32 s15, s40, 409600")
    for i5 in range(5):
        a(f"""
        v_add_u32 v{T}, s14, v0
        v_add_u32 v{T}, {128*i5}, v{T}
        v_mul_u32_u24 v{T+1}, 6554, v{T}
        v_lshrrev_b32 v{T+1}, 16, v{T+1}
        v_mul_u32_u24 v{T+2}, 10, v{T+1}
        v_sub_u32 v{T+2}, v{T}, v{T+2}
        v_mul_u32_u24 v{T+1}, 1280, v{T+1}
        v_lshl_add_u32 v{T+1}, v{T+2}, 4, v{T+1}
        v_add_u32 v{DV+i5}, s15, v{T+1}
        """)
    a("s_waitcnt lgkmcnt(0)")
    a("s_mul_i32 s14, s17, 160")
    srd(a, 20, 6, 7, 0, "s14")
    a("s_sub_u32 s22, 819200, s14")
    srd(a, 24, 12, 13, WS_END, None)
    srd(a, 28, 4, 5, 2621440, None)
    a(f"""
    s_mul_i32 s34, s40, 51200
    s_lshl_b32 s14, s41, 10
    s_add_u32 s34, s34, s14        ; m0 base
    s_lshl_b32 s14, s16, 2
    s_lshl_b32 s15, s40, 1
    s_add_u32 s14, s14, s15        ; T16 (tt=0)
    s_mul_i32 s36, s14, 20480
    s_mul_i32 s15, s41, 10240
    s_add_u32 s36, s36, s15
    s_add_u32 s36, s36, {WS_O}
    """)
    def dma(i):
        a(f"s_add_u32 m0, s34, {i*2048}")
        a(f"s_mov_b32 s35, {(i//5)*81920}")
        a(f"buffer_load_dwordx4 v{DV+i%5}, s[20:23], s35 offen lds")
    def oload(ksl):
        for tt in range(2):
            a(f"s_add_u32 s35, s36, {tt*20480 + (ksl//4)*4096}")
            a(f"buffer_load_dwordx4 {vr(OF+(ksl*2+tt)*4,4)}, v{VL}, s[24:27], s35 offen offset:{(ksl%4)*1024}")
    groups = [(range(0,7), [0,1]), (range(7,13), [2,3,4]), (range(13,19), [5,6]), (range(19,25), [7,8,9])]
    for gi, ks in groups:
        for k in ks: oload(k)
        for i in gi: dma(i)
    a(f"""
    v_and_b32 v{T}, 15, v0
    v_lshrrev_b32 v{T+1}, 4, v0
    s_lshl_b32 s14, s16, 6
    s_lshl_b32 s15, s19, 4
    s_add_u32 s14, s14, s15
    v_add_u32 v{T}, s14, v{T}
    v_mul_u32_u24 v{T}, 1280, v{T}
    v_lshl_add_u32 v{T}, v{T+1}, 4, v{T}
    v_cmp_gt_u32 vcc, 32, v0
    v_mov_b32 v{T+2}, {BIG}
    s_mul_i32 s14, s17, 160
    v_cndmask_b32 v{T+2}, v{T+2}, v{T}, vcc
    buffer_load_dwordx4 {vr(XR,4)}, v{T}, s[28:31], s14 offen
    buffer_load_dwordx4 {vr(XR+4,4)}, v{T}, s[28:31], s14 offen offset:64
    buffer_load_dwordx4 {vr(XR+8,4)}, v{T+2}, s[28:31], s14 offen offset:128
    """)
    a(f"""
    v_bfe_u32 v{T}, v0, 2, 2          ; r
    v_bfe_u32 v{T+1}, v0, 4, 1        ; g&1
    v_lshl_add_u32 v{T}, v{T+1}, 2, v{T}
    v_lshrrev_b32 v{T+1}, 5, v0       ; g>>1
    v_mul_u32_u24 v{T+2}, 24, v{T+1}
    v_add_u32 v{T+2}, v{T+2}, v{T}
    v_mul_u32_u24 v{T+2}, 160, v{T+2}
    v_mul_u32_u24 v{T+3}, 40, v{T+1}
    v_add3_u32 v{T+3}, v{T+3}, v{T}, 16
    v_mul_u32_u24 v{T+3}, 160, v{T+3}
    v_and_b32 v{T+4}, 3, v0
    v_lshlrev_b32 v{T+4}, 3, v{T+4}
    s_mul_i32 s14, s41, 51200
    v_add_u32 v{T+4}, s14, v{T+4}
    v_add_u32 v{RA}, v{T+2}, v{T+4}
    v_add_u32 v{RB}, v{T+3}, v{T+4}
    """)
    for i in range(40): a(f"v_mov_b32 v{ACC+i}, 0")
    def reads(ksl):
        wb = WF[ksl % 2]
        for ft in range(5):
            for e in range(2):
                if ksl % 5 < 4:
                    p = 4*(ksl//5) + ksl % 5
                    a(f"ds_read_b64_tr_b16 {vr(wb+ft*4+2*e,2)}, v{RA} offset:{(40*p+8*e)*160 + ft*32}")
                else:
                    b = ksl // 5
                    a(f"ds_read_b64_tr_b16 {vr(wb+ft*4+2*e,2)}, v{RB} offset:{(160*b+80*e)*160 + ft*32}")
    def compute(ksl):
        wb = WF[ksl % 2]
        for ft in range(5):
            for tt in range(2):
                ac = ACC + (ft*2+tt)*4
                a(f"v_mfma_f32_16x16x32_bf16 {vr(ac,4)}, {vr(wb+ft*4,4)}, {vr(OF+(ksl*2+tt)*4,4)}, {vr(ac,4)}")
    sync = {0: 37, 2: 25, 5: 15, 7: 3}
    for ksl in range(10):
        if ksl in sync:
            a(f"s_waitcnt vmcnt({sync[ksl]})")
            a("s_barrier")
        reads(ksl)
        if ksl > 0:
            a("s_waitcnt lgkmcnt(10)")
            compute(ksl-1)
    a("s_waitcnt lgkmcnt(0)")
    compute(9)
    write_partials(a, ACC, T, 40, 41)
    PV = 80
    a(f"""
    v_and_b32 v{T}, 15, v0
    s_lshl_b32 s14, s19, 4
    v_add_u32 v{T+1}, s14, v{T}
    v_mul_u32_u24 v{T+1}, 336, v{T+1}
    v_lshrrev_b32 v{T+2}, 4, v0
    v_lshl_add_u32 v{T+1}, v{T+2}, 5, v{T+1}
    """)
    for ch in range(3):
        for pp in range(2):
            for hf in range(2):
                a(f"ds_read_b128 {vr(PV+ch*16+pp*8+hf*4,4)}, v{T+1} offset:{pp*21504 + ch*128 + hf*16}")
    a(f"""
    v_lshlrev_b32 v{T+3}, 9, v{T+2}
    v_lshl_add_u32 v{T+3}, v{T}, 4, v{T+3}      ; g*512 + t*16
    v_lshlrev_b32 v{T+4}, 3, v{T}               ; t*8
    s_lshl_b32 s14, s16, 1
    s_add_u32 s14, s14, s41                     ; T32
    s_mul_i32 s42, s14, 40960
    s_mul_i32 s15, s17, 5120
    s_add_u32 s42, s42, s15
    s_lshl_b32 s15, s40, 8
    s_add_u32 s42, s42, s15
    s_add_u32 s42, s42, {WS_H}
    s_add_u32 s43, s42, 4096
    s_lshl_b32 s14, s14, 3
    s_add_u32 s14, s14, s17
    s_lshl_b32 s44, s14, 8
    s_lshl_b32 s15, s40, 7
    s_add_u32 s44, s44, s15
    s_add_u32 s44, s44, {WS_ST}
    s_mov_b32 s46, 0xffff0000
    s_waitcnt vmcnt(0) lgkmcnt(0)
    """)
    HP = 128
    HF = 144
    SUM, M2 = T+6, T+7
    a(f"v_mov_b32 v{SUM}, 0")
    for ch in range(3):
        if ch == 2: a("s_mov_b32 exec_hi, 0")
        b = PV + ch*16
        for k in range(4):
            a(f"v_pk_add_f32 {vr(b+2*k,2)}, {vr(b+2*k,2)}, {vr(b+8+2*k,2)}")
            a(f"v_lshlrev_b32 v{T+8}, 16, v{XR+ch*4+k}")
            a(f"v_and_b32 v{T+9}, s46, v{XR+ch*4+k}")
            a(f"v_pk_add_f32 {vr(b+2*k,2)}, {vr(b+2*k,2)}, {vr(T+8,2)}")
            a(f"v_cvt_pk_bf16_f32 v{HP+ch*4+k}, v{b+2*k}, v{b+2*k+1}")
            a(f"v_lshlrev_b32 v{HF+ch*8+2*k}, 16, v{HP+ch*4+k}")
            a(f"v_and_b32 v{HF+ch*8+2*k+1}, s46, v{HP+ch*4+k}")
            a(f"v_add_f32 v{SUM}, v{SUM}, v{HF+ch*8+2*k}")
            a(f"v_add_f32 v{SUM}, v{SUM}, v{HF+ch*8+2*k+1}")
        if ch < 2:
            a(f"buffer_store_dwordx4 {vr(HP+ch*4,4)}, v{T+3}, s[24:27], s42 offen offset:{ch*2048}")
        else:
            a(f"buffer_store_dwordx4 {vr(HP+ch*4,4)}, v{T+3}, s[24:27], s43 offen")
            a("s_mov_b64 exec, -1")
    def reduce4(v, t):
        a(f"""
        v_mov_b32 v{t}, v{v}
        s_nop 1
        v_permlane32_swap_b32 v{v}, v{t}
        s_nop 1
        v_add_f32 v{v}, v{v}, v{t}
        v_mov_b32 v{t}, v{v}
        s_nop 1
        v_permlane16_swap_b32 v{v}, v{t}
        s_nop 1
        v_add_f32 v{v}, v{v}, v{t}
        """)
    reduce4(SUM, T+8)
    a(f"v_mul_f32 v{T+9}, 0xbc4ccccd, v{SUM}")
    a(f"v_mov_b32 v{M2}, 0")
    for ch in range(3):
        if ch == 2: a("s_mov_b32 exec_hi, 0")
        for k in range(8):
            a(f"v_add_f32 v{HF+ch*8+k}, v{HF+ch*8+k}, v{T+9}")
            a(f"v_fmac_f32 v{M2}, v{HF+ch*8+k}, v{HF+ch*8+k}")
    a("s_mov_b64 exec, -1")
    reduce4(M2, T+8)
    a("s_mov_b32 exec_lo, 0xffff\ns_mov_b32 exec_hi, 0")
    a(f"buffer_store_dwordx2 {vr(SUM,2)}, v{T+4}, s[24:27], s44 offen")
    a.label("L_k3_done")
    a("s_endpgm")
    return kernel_desc("wo_kernel", 208, 64)
```

```python
from asmlib import *
from gen import *
import struct
def fbits(x): return struct.unpack('<I', struct.pack('<f', x))[0]

def gen_k4(a):
    kernel_begin(a, "gu_kernel")
    a("s_cmp_ge_u32 s2, 256")
    a("s_cbranch_scc1 L_k4_done")
    a("s_load_dwordx4 s[8:11], s[0:1], 32")
    a("s_load_dwordx2 s[12:13], s[0:1], 72")
    a("""
    s_and_b32 s14, s2, 7
    s_lshr_b32 s15, s2, 3
    s_lshr_b32 s16, s14, 2
    s_lshl_b32 s16, s16, 3
    s_and_b32 s17, s15, 7
    s_add_u32 s16, s16, s17        ; mt
    s_and_b32 s17, s14, 3
    s_lshl_b32 s17, s17, 2
    s_lshr_b32 s18, s15, 3
    s_add_u32 s17, s17, s18        ; nt
    v_lshrrev_b32 v1, 6, v0
    v_and_b32 v0, 63, v0
    v_readfirstlane_b32 s19, v1
    """)
    DV = 2
    R = 9
    VL = 12
    T = 14
    MB = 32
    KC = 36
    WF = 40
    HF = 68
    ACC = 148
    MB, KC, WF, HF, ACC = 28, 32, 36, 64, 144
    SLOT = 28928
    a("""
    s_and_b32 s40, s19, 1          ; mat
    s_lshr_b32 s41, s19, 1         ; rh
    """)
    a(f"v_lshlrev_b32 v{VL}, 4, v0")
    a(f"""
    v_and_b32 v{T}, 31, v0
    v_lshrrev_b32 v{T+1}, 5, v0
    v_lshlrev_b32 v{T+1}, 10, v{T+1}
    v_lshl_add_u32 v{T+1}, v{T}, 3, v{T+1}
    v_lshlrev_b32 v{T+2}, 3, v{T}
    s_lshl_b32 s14, s16, 2
    s_add_u32 s42, s14, s19                    ; T32
    s_lshl_b32 s43, s42, 11
    s_add_u32 s43, s43, {WS_ST}
    s_mul_i32 s44, s17, 1792
    s_add_u32 s44, s44, {WS_CS}
    s_mul_i32 s36, s42, 40960
    s_add_u32 s36, s36, {WS_H}
    s_waitcnt lgkmcnt(0)
    """)
    srd(a, 24, 12, 13, WS_END, None)
    ST = T + 4
    for i in range(4):
        a(f"buffer_load_dwordx2 {vr(ST+2*i,2)}, v{T+1}, s[24:27], s43 offen offset:{i*256}")
    for ft in range(7):
        a(f"buffer_load_dwordx2 {vr(WF+4*ft,2)}, v{T+2}, s[24:27], s44 offen offset:{ft*256}")
    a("s_mul_i32 s15, s41, 110592")
    for j in range(7):
        a(f"""
        v_add_u32 v{T}, {64*j}, v0
        v_mul_u32_u24 v{T+1}, 4682, v{T}
        v_lshrrev_b32 v{T+1}, 16, v{T+1}
        v_mul_u32_u24 v{T+2}, 14, v{T+1}
        v_sub_u32 v{T+2}, v{T}, v{T+2}
        v_mul_u32_u24 v{T+1}, 3456, v{T+1}
        v_lshl_add_u32 v{T+1}, v{T+2}, 4, v{T+1}
        v_add_u32 v{DV+j}, s15, v{T+1}
        """)
    a("""
    s_mul_i32 s14, s17, 224
    s_cmp_eq_u32 s40, 0
    s_cselect_b32 s20, s8, s10
    s_cselect_b32 s21, s9, s11
    s_add_u32 s20, s20, s14
    s_addc_u32 s21, s21, 0
    s_sub_u32 s22, 2211840, s14
    s_mov_b32 s23, 0x00020000
    s_mul_i32 s34, s40, 14464
    s_mul_i32 s14, s41, 7168
    s_add_u32 s34, s34, s14
    s_mov_b32 s35, 0
    s_mov_b32 s32, 0
    """)
    def stage_loads(slot):
        out = []
        for ks in range(4):
            out.append([f"buffer_load_dwordx4 {vr(HF+(slot*4+ks)*4,4)}, v{VL}, s[24:27], s36 offen offset:{ks*1024}"])
        for j in range(7):
            out.append([f"s_add_u32 m0, s34, {slot*SLOT + j*1024}", f"buffer_load_dwordx4 v{DV+j}, s[20:23], s35 offen lds"])
        return out
    adv = ["s_add_u32 s35, s35, 221184", "s_add_u32 s36, s36, 4096", "s_add_u32 s32, s32, 1"]
    for st in range(4):
        for op in stage_loads(st):
            a(op[0])
            if len(op) > 1:
                a("s_nop 0"); a(op[1])
        for x in adv: a(x)
    a(f"""
    v_bfe_u32 v{T}, v0, 2, 2
    v_lshrrev_b32 v{T+1}, 5, v0
    v_lshl_add_u32 v{T}, v{T+1}, 3, v{T}
    v_mul_u32_u24 v{T}, 224, v{T}
    v_bfe_u32 v{T+1}, v0, 4, 1
    v_mul_u32_u24 v{T+1}, 14464, v{T+1}
    v_and_b32 v{T+2}, 3, v0
    v_lshlrev_b32 v{T+2}, 3, v{T+2}
    v_add3_u32 v{R}, v{T}, v{T+1}, v{T+2}
    v_add_u32 v{R+1}, {2*SLOT}, v{R}
    v_add_u32 v{R+2}, {4*SLOT}, v{R}
    """)
    for ft in range(7):
        a(f"v_mov_b32 v{WF+4*ft+2}, 0")
        a(f"v_mov_b32 v{WF+4*ft+3}, 0")
    a("s_waitcnt vmcnt(51)")
    a(f"""
    v_add_f32 v{T}, v{ST}, v{ST+2}
    v_add_f32 v{T+1}, v{ST+4}, v{ST+6}
    v_add_f32 v{T}, v{T}, v{T+1}
    v_mov_b32 v{T+1}, v{T}
    v_add_f32 v{T+2}, v{ST+1}, v{ST+3}
    v_add_f32 v{T+3}, v{ST+5}, v{ST+7}
    v_permlane32_swap_b32 v{T}, v{T+1}
    v_add_f32 v{T+2}, v{T+2}, v{T+3}          ; sum M2_i
    s_nop 0
    v_add_f32 v{T}, v{T}, v{T+1}
    v_mul_f32 v{T}, {fbits(1/640):#x}, v{T}   ; mean
    s_mov_b32 s14, {fbits(1/80):#x}
    v_mov_b32 v{T+3}, 0
    """)
    for i in range(4):
        a(f"v_fma_f32 v{T+1}, v{ST+2*i}, s14, -v{T}")
        a(f"v_fmac_f32 v{T+3}, v{T+1}, v{T+1}")
    a(f"""
    v_mov_b32 v{T+1}, 0x42a00000
    v_fmac_f32 v{T+2}, v{T+1}, v{T+3}
    v_mov_b32 v{T+1}, v{T+2}
    s_nop 1
    v_permlane32_swap_b32 v{T+2}, v{T+1}
    s_nop 1
    v_add_f32 v{T+2}, v{T+2}, v{T+1}
    v_mul_f32 v{T+2}, {fbits(1/640):#x}, v{T+2}   ; var
    """)
    rnd_bf16(a, T+2, T+2)
    a(f"v_add_f32 v{T+2}, 0x3727c5ac, v{T+2}")
    rnd_bf16(a, T+2, T+2)
    a(f"v_sqrt_f32 v{T+2}, v{T+2}")
    a("s_nop 0")
    rnd_bf16(a, T+2, T+2)
    c1 = -2.0 * 0.7978845608028654 * 1.4426950408889634
    a(f"""
    v_rcp_f32 v{T+3}, v{T+2}                  ; r
    v_mul_f32 v{KC+2}, v{T+2}, v{T+2}         ; ir2 = s^2
    v_sub_f32 v{T}, 0, v{T}
    v_mul_f32 v{KC}, {fbits(c1):#x}, v{T+3}   ; k1
    v_mul_f32 v{T+1}, v{T+3}, v{T+3}
    v_mul_f32 v{T+1}, {fbits(0.044715):#x}, v{T+1}
    v_mul_f32 v{KC+1}, v{KC}, v{T+1}          ; k2
    v_cvt_pk_bf16_f32 v{MB}, v{T}, v{T}
    v_cvt_pk_bf16_f32 v{MB+1}, v{T}, 0
    v_cmp_gt_u32 vcc, 32, v0
    v_mov_b32 v{MB+2}, 0
    v_mov_b32 v{MB+3}, 0
    v_cndmask_b32 v{MB}, 0, v{MB}, vcc
    v_cndmask_b32 v{MB+1}, 0, v{MB+1}, vcc
    s_waitcnt vmcnt(44)
    s_nop 0
    """)
    for ft in range(7):
        a(f"v_mfma_f32_32x32x16_bf16 {vr(ACC+16*ft,16)}, {vr(WF+4*ft,4)}, {vr(MB,4)}, 0")
    def rd(slot, ks, ft):
        rb = R + slot // 2
        so = (slot % 2) * SLOT
        return [f"ds_read_b64_tr_b16 {vr(WF+4*ft+2*e,2)}, v{rb} offset:{so + (16*ks+4*e)*224 + ft*32}" for e in range(2)]
    a("s_waitcnt vmcnt(33)")
    a("s_barrier")
    for ft in range(7):
        for x in rd(0, 0, ft): a(x)
    a.label("L_k4_loop")
    for slot in range(5):
        for ks in range(4):
            extra = []
            if ks == 3:
                a(f"""
                s_cmp_lt_u32 s32, 10
                s_cselect_b32 s35, s35, {BIG}
                s_cselect_b32 s36, s36, {BIG}
                s_waitcnt vmcnt(22)
                s_barrier
                """)
                extra = stage_loads((slot + 4) % 5)
            ns, nk = (slot, ks+1) if ks < 3 else ((slot+1) % 5, 0)
            for ft in range(7):
                ex = extra[:2] if ft < 4 else extra[:1]
                extra = extra[len(ex):]
                a("s_waitcnt lgkmcnt(12)")
                a(f"v_mfma_f32_32x32x16_bf16 {vr(ACC+16*ft,16)}, {vr(WF+4*ft,4)}, {vr(HF+(slot*4+ks)*4,4)}, {vr(ACC+16*ft,16)}")
                r = rd(ns, nk, ft)
                if len(ex) == 2:
                    for i in range(2):
                        a(ex[i][0])
                        a(r[i])
                        if len(ex[i]) > 1: a(ex[i][1])
                elif len(ex) == 1:
                    a(ex[0][0]); a(r[0])
                    if len(ex[0]) > 1: a(ex[0][1])
                    a(r[1])
                else:
                    a(r[0]); a(r[1])
            assert not extra
            if ks == 3:
                for x in adv: a(x)
    a("s_cmp_lt_u32 s32, 14")
    a("s_cbranch_scc1 L_k4_loop")
    a(f"""
    s_mul_i32 s44, s42, 110592
    s_add_u32 s44, s44, {WS_G}
    s_mul_i32 s45, s17, 7
    s_lshl_b32 s14, s45, 10
    s_add_u32 s44, s44, s14
    s_waitcnt vmcnt(0) lgkmcnt(0)
    """)
    a.nop(8)
    E = HF
    for ft in range(7):
        ac = ACC + 16*ft
        pb = E + 16 + (ft % 2) * 4
        for k in range(4):
            g = ac + 2*k; u = ac + 8 + 2*k; t = E + 2*k
            a(f"v_pk_mul_f32 {vr(t,2)}, {vr(g,2)}, {vr(g,2)}")
            a(f"v_pk_fma_f32 {vr(t,2)}, {vr(t,2)}, {vr(KC,2)}, {vr(KC,2)} op_sel:[0,1,0] op_sel_hi:[1,1,0]")
            a(f"v_pk_mul_f32 {vr(t,2)}, {vr(t,2)}, {vr(g,2)}")
            a(f"v_pk_mul_f32 {vr(u,2)}, {vr(u,2)}, {vr(g,2)}")
        for k in range(8):
            a(f"v_exp_f32 v{E+k}, v{E+k}")
        for k in range(4):
            t = E + 2*k
            a(f"v_pk_fma_f32 {vr(t,2)}, {vr(t,2)}, {vr(KC+2,2)}, {vr(KC+2,2)} op_sel_hi:[1,0,0]")
        for k in range(8):
            a(f"v_rcp_f32 v{E+k}, v{E+k}")
        a(f"s_add_u32 s14, s45, {ft}")
        a(f"s_cmp_lt_u32 s14, 108")
        a(f"s_cselect_b32 s14, s44, {BIG}")
        for k in range(4):
            u = ac + 8 + 2*k; t = E + 2*k
            a(f"v_pk_mul_f32 {vr(u,2)}, {vr(u,2)}, {vr(t,2)}")
        for k in range(4):
            u = ac + 8 + 2*k
            a(f"v_cvt_pk_bf16_f32 v{pb+k}, v{u}, v{u+1}")
        if ft >= 4:
            a(f"s_add_u32 s14, s14, 4096")
        a(f"buffer_store_dwordx4 {vr(pb,4)}, v{VL}, s[24:27], s14 offen offset:{(ft%4)*1024}")
    a.label("L_k4_done")
    a("s_endpgm")
    return kernel_desc("gu_kernel", 256, 64)
```

```python
from asmlib import *
from gen import *
from gen_k3 import decode_64x80, write_partials

def gen_k5(a):
    kernel_begin(a, "dn_kernel")
    a("s_cmp_ge_u32 s2, 256")
    a("s_cbranch_scc1 L_k5_done")
    a("s_load_dwordx4 s[4:7], s[0:1], 48")
    a("s_load_dwordx2 s[12:13], s[0:1], 72")
    decode_64x80(a)
    DV = 2
    R = 7
    VG = 10
    T = 12
    HR = 24
    VO = 36
    ACC = 40
    WF = 80
    GF = 112
    NS = 7
    SLOT = 20480
    a("""
    s_and_b32 s40, s19, 1          ; th
    s_lshr_b32 s41, s19, 1         ; kh
    s_mul_i32 s15, s19, 40960
    """)
    for j in range(5):
        a(f"""
        v_add_u32 v{T}, {64*j}, v0
        v_mul_u32_u24 v{T+1}, 6554, v{T}
        v_lshrrev_b32 v{T+1}, 16, v{T+1}
        v_mul_u32_u24 v{T+2}, 10, v{T+1}
        v_sub_u32 v{T+2}, v{T}, v{T+2}
        v_mul_u32_u24 v{T+3}, 1280, v{T+1}
        v_lshl_add_u32 v{T+3}, v{T+2}, 4, v{T+3}
        v_add_u32 v{DV+j}, s15, v{T+3}
        """)
        if j < 3:
            a(f"""
            v_mov_b32 v{VO+j}, v{T+3}
            v_lshlrev_b32 v{T+4+j}, 9, v{T+2}
            v_lshl_add_u32 v{T+4+j}, v{T+1}, 4, v{T+4+j}
            v_mul_u32_u24 v{T+8+j}, 336, v{T+1}
            v_lshl_add_u32 v{T+8+j}, v{T+2}, 5, v{T+8+j}
            """)
    a(f"""
    v_cmp_gt_u32 vcc, 32, v0
    v_mov_b32 v{T}, {BIG}
    v_and_b32 v{T+1}, 15, v0
    v_cndmask_b32 v{VO+2}, v{T}, v{VO+2}, vcc
    v_cndmask_b32 v{T+6}, v{T}, v{T+6}, vcc
    v_lshrrev_b32 v{T+2}, 4, v0
    v_lshlrev_b32 v{T+2}, 9, v{T+2}
    v_lshl_add_u32 v{VG}, v{T+1}, 4, v{T+2}      ; g*512 + t*16
    s_waitcnt lgkmcnt(0)
    s_mul_i32 s14, s17, 160
    """)
    srd(a, 20, 4, 5, 0, "s14")
    a("s_sub_u32 s22, 2211840, s14")
    srd(a, 24, 12, 13, WS_END, None)
    srd(a, 28, 6, 7, 2621440, None)
    a(f"""
    s_mul_i32 s34, s19, 5120       ; m0 base
    s_mov_b32 s35, 0
    s_lshl_b32 s14, s16, 1
    s_add_u32 s14, s14, s40
    s_mul_i32 s36, s14, 110592
    s_lshl_b32 s15, s41, 11        ; kh*2048
    s_add_u32 s36, s36, s15
    s_add_u32 s36, s36, {WS_G}
    s_add_u32 s37, s36, 4096
    s_mov_b32 s32, 0
    s_lshl_b32 s14, s16, 1
    s_add_u32 s14, s14, s41
    s_mul_i32 s42, s14, 40960
    s_mul_i32 s15, s17, 5120
    s_add_u32 s42, s42, s15
    s_lshl_b32 s15, s40, 8
    s_add_u32 s42, s42, s15
    s_add_u32 s42, s42, {WS_H}
    """)
    def stage_loads(slot):
        out = []
        for k2 in range(2):
            for tt in range(2):
                out.append([f"buffer_load_dwordx4 {vr(GF+((slot*2+k2)*2+tt)*4,4)}, v{VG}, s[24:27], s{36+k2} offen offset:{tt*256}"])
        for j in range(5):
            out.append([f"s_add_u32 m0, s34, {slot*SLOT + j*1024}", f"buffer_load_dwordx4 v{DV+j}, s[20:23], s35 offen lds"])
        return out
    adv = ["s_add_u32 s35, s35, 163840", "s_add_u32 s36, s36, 8192", "s_add_u32 s37, s37, 8192", "s_add_u32 s32, s32, 1"]
    for st in range(NS-1):
        for op in stage_loads(st):
            a(op[0])
            if len(op) > 1:
                a("s_nop 0"); a(op[1])
        for x in adv: a(x)
    for j in range(3):
        a(f"buffer_load_dwordx4 {vr(HR+4*j,4)}, v{T+4+j}, s[24:27], s42 offen")
    LA = 100
    a("s_mul_i32 s14, s19, 5376")
    for j in range(3):
        a(f"v_add_u32 v{LA+j}, s14, v{T+8+j}")
    a(f"""
    v_bfe_u32 v{T}, v0, 2, 2
    v_bfe_u32 v{T+1}, v0, 4, 1
    v_lshl_add_u32 v{T}, v{T+1}, 2, v{T}
    v_lshrrev_b32 v{T+1}, 5, v0
    v_lshl_add_u32 v{T}, v{T+1}, 4, v{T}
    s_lshl_b32 s14, s41, 5
    v_add_u32 v{T}, s14, v{T}
    v_mul_u32_u24 v{T}, 160, v{T}
    v_and_b32 v{T+1}, 3, v0
    v_lshl_add_u32 v{R}, v{T+1}, 3, v{T}
    v_add_u32 v{R+1}, {3*SLOT}, v{R}
    v_add_u32 v{R+2}, {6*SLOT}, v{R}
    """)
    for i in range(40): a(f"v_mov_b32 v{ACC+i}, 0")
    def rd(slot, k2, ft):
        rb = R + slot // 3
        so = (slot % 3) * SLOT
        return [f"ds_read_b64_tr_b16 {vr(WF+4*ft+2*e,2)}, v{rb} offset:{so + (64*k2+8*e)*160 + ft*32}" for e in range(2)]
    a("s_waitcnt vmcnt(48)")
    a("s_barrier")
    for ft in range(5):
        for x in rd(0, 0, ft): a(x)
    a.label("L_k5_loop")
    for slot in range(NS):
        for k2 in range(2):
            extra = []
            if k2 == 1:
                if slot == NS-1:
                    a("s_cmp_eq_u32 s32, 19")
                    a("s_cbranch_scc1 L_k5_epi")
                a(f"""
                s_cmp_lt_u32 s32, 14
                s_cselect_b32 s35, s35, {BIG}
                s_cselect_b32 s36, s36, {BIG}
                s_cmp_lt_u32 s32, 13
                s_cselect_b32 s37, s37, {BIG}
                """)
                a(f"s_waitcnt vmcnt(36)")
                a("s_barrier")
                extra = stage_loads((slot + NS - 1) % NS)
            ns, nk = (slot, 1) if k2 == 0 else ((slot+1) % NS, 0)
            for ft in range(5):
                ex = extra[:2]
                extra = extra[len(ex):]
                a("s_waitcnt lgkmcnt(8)")
                r = rd(ns, nk, ft)
                for tt in range(2):
                    ac = ACC + (ft*2+tt)*4
                    a(f"v_mfma_f32_16x16x32_bf16 {vr(ac,4)}, {vr(WF+4*ft,4)}, {vr(GF+((slot*2+k2)*2+tt)*4,4)}, {vr(ac,4)}")
                for i in range(2):
                    if i < len(ex): a(ex[i][0])
                    a(r[i])
                    if i < len(ex) and len(ex[i]) > 1: a(ex[i][1])
            assert not extra
            if k2 == 1:
                for x in adv: a(x)
    a("s_branch L_k5_loop")
    a.label("L_k5_epi")
    a("s_waitcnt vmcnt(0) lgkmcnt(0)")
    write_partials(a, ACC, T, 40, 41)
    PV = 112
    for j in range(3):
        for pp in range(2):
            for hf in range(2):
                a(f"ds_read_b128 {vr(PV+j*16+pp*8+hf*4,4)}, v{LA+j} offset:{pp*21504 + hf*16}")
    a(f"""
    s_lshl_b32 s14, s16, 6
    s_lshl_b32 s15, s19, 4
    s_add_u32 s14, s14, s15
    s_mul_i32 s14, s14, 1280
    s_mul_i32 s15, s17, 160
    s_add_u32 s14, s14, s15
    s_mov_b32 s46, 0xffff0000
    """)
    HP = 80
    for j in range(3):
        a(f"s_waitcnt lgkmcnt({8-4*j})")
        b = PV + j*16
        for k in range(4):
            a(f"v_pk_add_f32 {vr(b+2*k,2)}, {vr(b+2*k,2)}, {vr(b+8+2*k,2)}")
            a(f"v_lshlrev_b32 v{T+8}, 16, v{HR+j*4+k}")
            a(f"v_and_b32 v{T+9}, s46, v{HR+j*4+k}")
            a(f"v_pk_add_f32 {vr(b+2*k,2)}, {vr(b+2*k,2)}, {vr(T+8,2)}")
            a(f"v_cvt_pk_bf16_f32 v{HP+j*4+k}, v{b+2*k}, v{b+2*k+1}")
        a(f"buffer_store_dwordx4 {vr(HP+j*4,4)}, v{VO+j}, s[28:31], s14 offen")
    a.label("L_k5_done")
    a("s_endpgm")
    return kernel_desc("dn_kernel", 224, 64)
```

```python
import sys
from asmlib import *

WS_QKV = 0
WS_O   = 0x800000
WS_H   = 0xB00000
WS_ST  = 0xE00000
WS_CS  = 0xE40000
WS_G   = 0x1000000
WS_END = 0x1800000
BIG = 0x40000000

def rnd_bf16(a, d, s):
    a(f"v_cvt_pk_bf16_f32 v{d}, v{s}, v{s}")
    a(f"v_lshlrev_b32 v{d}, 16, v{d}")

def gen_k1(a):
    kernel_begin(a, "qkv_kernel")
    a("s_cmp_ge_u32 s2, 256")
    a("s_cbranch_scc1 L_k1_done")
    a("s_load_dwordx4 s[4:7], s[0:1], 0")
    a("s_load_dwordx4 s[8:11], s[0:1], 32")
    a("s_load_dwordx2 s[12:13], s[0:1], 72")
    a("""
    s_and_b32 s14, s2, 7
    s_lshr_b32 s15, s2, 3
    s_lshr_b32 s16, s14, 1
    s_lshl_b32 s16, s16, 2
    s_and_b32 s17, s15, 3
    s_add_u32 s16, s16, s17        ; mt
    s_and_b32 s17, s14, 1
    s_lshl_b32 s17, s17, 3
    s_lshr_b32 s18, s15, 2
    s_add_u32 s17, s17, s18        ; nt
    v_lshrrev_b32 v1, 6, v0
    v_and_b32 v0, 63, v0           ; lane
    v_readfirstlane_b32 s19, v1    ; wave
    s_cmp_eq_u32 s17, 15
    s_cbranch_scc1 L_k1_aux
    """)
    VA, VW = 2, 6
    RDA, RDW = 10, 18
    VSUM, VSQ, VCS = 22, 23, 24
    T = 26
    ACC = 64
    F = [128, 144]
    a(f"""
    v_lshrrev_b32 v{T}, 3, v0              ; l>>3
    s_lshl_b32 s14, s19, 5                 ; 32w
    v_add_u32 v{T}, s14, v{T}              ; row (j=0)
    v_mul_u32_u24 v{T}, 1280, v{T}
    v_and_b32 v{T+1}, 7, v0
    v_lshrrev_b32 v{T+2}, 4, v0            ; l>>4 (0..3)
    v_xor_b32 v{T+3}, v{T+1}, v{T+2}       ; even j
    v_xor_b32 v{T+4}, 4, v{T+3}            ; odd j
    v_lshl_add_u32 v{VA}, v{T+3}, 4, v{T}
    v_lshl_add_u32 v{VA+1}, v{T+4}, 4, v{T}
    v_add_u32 v{VA+1}, 10240, v{VA+1}
    v_add_u32 v{VA+2}, 20480, v{VA}
    v_add_u32 v{VA+3}, 20480, v{VA+1}
    """)
    a(f"""
    s_lshl_b32 s14, s19, 4
    v_add_u32 v{T}, s14, v{T+2}
    v_mul_u32_u24 v{T}, 3840, v{T}
    v_and_b32 v{T+1}, 15, v0
    v_lshlrev_b32 v{T+3}, 2, v{T+2}
    v_xor_b32 v{T+1}, v{T+1}, v{T+3}
    v_lshl_add_u32 v{VW}, v{T+1}, 4, v{T}
    v_add_u32 v{VW+1}, 15360, v{VW}
    v_add_u32 v{VW+2}, 30720, v{VW}
    v_add_u32 v{VW+3}, 46080, v{VW}
    s_waitcnt lgkmcnt(0)
    s_mul_i32 s14, s16, 163840
    """)
    srd(a, 20, 4, 5, 163840, "s14")
    a("s_lshl_b32 s14, s17, 8")
    srd(a, 24, 6, 7, 0, "s14")
    a("s_sub_u32 s26, 2457600, s14")
    srd(a, 28, 12, 13, 64*122880, None)
    a("""
    s_lshl_b32 s34, s19, 12
    s_mov_b32 s35, 0
    s_mov_b32 s36, 0
    """)
    def dma_list():
        out = []
        for j in range(4):
            out.append((f"s_add_u32 m0, s34, {j*1024}", f"buffer_load_dwordx4 v{VA+j}, s[20:23], s35 offen lds"))
        for j in range(4):
            out.append((f"s_add_u32 m0, s34, {16384+j*1024}", f"buffer_load_dwordx4 v{VW+j}, s[24:27], s36 offen lds"))
        return out
    for st in range(4):
        for m, l in dma_list():
            a(m); a("s_nop 0"); a(l)
        a("s_add_u32 s34, s34, 32768")
        a("s_add_u32 s35, s35, 128")
        a("s_add_u32 s36, s36, 245760")
    a(f"""
    s_lshr_b32 s40, s19, 1         ; wm
    s_and_b32 s41, s19, 1          ; wn
    v_and_b32 v{T}, 31, v0         ; t
    v_lshrrev_b32 v{T+1}, 5, v0    ; hh
    v_lshrrev_b32 v{T+2}, 1, v{T}
    v_and_b32 v{T+2}, 7, v{T+2}    ; f
    s_lshl_b32 s14, s40, 6
    s_lshl_b32 s15, s41, 5
    s_add_u32 s42, s14, s15
    s_xor_b32 s43, s42, 32
    v_add_u32 v{T+3}, s42, v{T}
    v_lshlrev_b32 v{T+3}, 7, v{T+3}
    v_add_u32 v{T+4}, s43, v{T}
    v_lshlrev_b32 v{T+4}, 7, v{T+4}
    """)
    for ks in range(4):
        a(f"""
        v_add_u32 v{T+5}, {2*ks}, v{T+1}
        v_xor_b32 v{T+5}, v{T+5}, v{T+2}
        v_lshl_add_u32 v{RDA+2*ks}, v{T+5}, 4, v{T+3}
        v_lshl_add_u32 v{RDA+2*ks+1}, v{T+5}, 4, v{T+4}
        """)
    a(f"""
    v_bfe_u32 v{T}, v0, 2, 2        ; r
    v_and_b32 v{T+2}, 3, v0         ; c
    v_bfe_u32 v{T+3}, v0, 4, 1      ; G&1
    v_lshl_add_u32 v{T+4}, v{T+1}, 3, v{T}     ; 8hh + r
    v_lshlrev_b32 v{T+4}, 8, v{T+4}
    v_add_u32 v{T+4}, 16384, v{T+4}
    v_lshlrev_b32 v{T+5}, 3, v{T+2}            ; c*8  ((c>>1)*16 + (c&1)*8)
    v_add_u32 v{T+4}, v{T+4}, v{T+5}
    v_lshl_add_u32 v{T+4}, v{T+3}, 5, v{T+4}   ; + (G&1)*32
    s_lshl_b32 s14, s41, 1
    s_add_u32 s44, s14, s40
    s_xor_b32 s45, s44, 1
    v_xor_b32 v{T+5}, s44, v{T}
    v_lshl_add_u32 v{RDW}, v{T+5}, 6, v{T+4}
    v_xor_b32 v{T+5}, s45, v{T}
    v_lshl_add_u32 v{RDW+1}, v{T+5}, 6, v{T+4}
    v_mov_b32 v{VSUM}, 0
    v_mov_b32 v{VSQ}, 0
    v_mov_b32 v{VCS}, 0
    s_mov_b32 s37, 0x3F803F80
    s_mov_b32 s32, 0
    s_mov_b32 s38, 0
    """)
    for i in range(64):
        a(f"v_mov_b32 v{ACC+i}, 0")
    def reads(ks, fb):
        b = F[fb]
        return [f"ds_read_b128 {vr(b,4)}, v{RDA+2*ks}",
                f"ds_read_b64_tr_b16 {vr(b+8,2)}, v{RDW} offset:{ks*4096}",
                f"ds_read_b64_tr_b16 {vr(b+10,2)}, v{RDW} offset:{ks*4096+1024}",
                f"ds_read_b128 {vr(b+4,4)}, v{RDA+2*ks+1}",
                f"ds_read_b64_tr_b16 {vr(b+12,2)}, v{RDW+1} offset:{ks*4096}",
                f"ds_read_b64_tr_b16 {vr(b+14,2)}, v{RDW+1} offset:{ks*4096+1024}"]
    def compute(fb, extra=None):
        b = F[fb]
        extra = list(extra or [])
        mf = []
        for fi in range(2):
            for ti in range(2):
                ac = ACC + (fi*2+ti)*16
                mf.append(f"v_mfma_f32_32x32x16_bf16 {vr(ac,16)}, {vr(b+8+4*fi,4)}, {vr(b+4*ti,4)}, {vr(ac,16)}")
        for q in range(4):
            a(mf[q])
            ex = [extra.pop(0) for _ in range(min(4, len(extra)))]
            dd = [f"v_dot2c_f32_bf16 v{VSUM}, s37, v{b+q}",
                  f"v_dot2c_f32_bf16 v{VSQ}, v{b+q}, v{b+q}",
                  f"v_dot2c_f32_bf16 v{VCS}, s37, v{b+8+q}"]
            seq = []
            if len(ex) == 4:
                seq = [ex[0], dd[0], ex[1], ex[2], dd[1], ex[3], dd[2]]
            else:
                seq = dd + ex
            for s in seq: a(s)
    a("s_waitcnt vmcnt(24)")
    a("s_barrier")
    for r in reads(0, 0): a(r)
    a.label("L_k1_loop")
    a("""
    s_add_u32 s39, s38, 32768
    s_cmp_eq_u32 s39, 163840
    s_cselect_b32 s39, 0, s39
    s_sub_u32 s33, s39, s38
    s_mov_b32 s38, s39
    """)
    for r in reads(1, 1): a(r)
    a(f"v_add_u32 v{RDA+2}, s33, v{RDA+2}")
    a(f"v_add_u32 v{RDA+3}, s33, v{RDA+3}")
    a("s_waitcnt lgkmcnt(6)")
    compute(0)
    for r in reads(2, 0): a(r)
    a(f"v_add_u32 v{RDA+4}, s33, v{RDA+4}")
    a(f"v_add_u32 v{RDA+5}, s33, v{RDA+5}")
    a("s_waitcnt lgkmcnt(6)")
    compute(1)
    for r in reads(3, 1): a(r)
    for x in (RDA+6, RDA+7, RDA, RDA+1, RDW, RDW+1):
        a(f"v_add_u32 v{x}, s33, v{x}")
    a("s_waitcnt lgkmcnt(6)")
    compute(0)
    a(f"""
    s_cmp_lt_u32 s32, 6
    s_cselect_b32 s35, s35, {BIG}
    s_cselect_b32 s36, s36, {BIG}
    s_waitcnt vmcnt(16)
    s_barrier
    """)
    for r in reads(0, 0): a(r)
    a("s_waitcnt lgkmcnt(6)")
    ex = []
    for m, l in dma_list(): ex += [m, l]
    compute(1, ex)
    a("""
    s_add_u32 s34, s34, 32768
    s_sub_u32 s39, s34, 163840
    s_cmp_ge_u32 s34, 163840
    s_cselect_b32 s34, s39, s34
    s_add_u32 s35, s35, 128
    s_add_u32 s36, s36, 245760
    s_add_u32 s32, s32, 1
    s_cmp_lt_u32 s32, 10
    s_cbranch_scc1 L_k1_loop
    """)
    a("s_waitcnt vmcnt(0) lgkmcnt(0)")
    a("s_barrier")
    a(f"""
    v_mov_b32 v{T}, v{VSUM}
    v_mov_b32 v{T+1}, v{VSQ}
    v_mov_b32 v{T+2}, v{VCS}
    s_nop 1
    v_permlane32_swap_b32 v{VSUM}, v{T}
    v_permlane32_swap_b32 v{VSQ}, v{T+1}
    v_permlane32_swap_b32 v{VCS}, v{T+2}
    s_nop 1
    v_add_f32 v{VSUM}, v{VSUM}, v{T}
    v_add_f32 v{VSQ}, v{VSQ}, v{T+1}
    v_add_f32 v{VCS}, v{VCS}, v{T+2}
    v_mul_f32 v{VSUM}, 0x3acccccd, v{VSUM}
    v_mul_f32 v{VSQ}, 0x3acccccd, v{VSQ}
    v_fma_f32 v{VSQ}, -v{VSUM}, v{VSUM}, v{VSQ} ; var
    v_max_f32 v{VSQ}, 0, v{VSQ}
    """)
    rnd_bf16(a, T, VSUM)
    a(f"v_sub_f32 v{T}, 0, v{T}")
    rnd_bf16(a, T+1, VSQ)
    a(f"v_add_f32 v{T+1}, 0x3727c5ac, v{T+1}")
    rnd_bf16(a, T+1, T+1)
    a(f"v_sqrt_f32 v{T+1}, v{T+1}")
    a("s_nop 0")
    rnd_bf16(a, T+1, T+1)
    a(f"v_rcp_f32 v{T+1}, v{T+1}")
    a(f"""
    v_and_b32 v{T+2}, 31, v0                  ; t / i
    v_add_u32 v{T+3}, s42, v{T+2}
    v_lshlrev_b32 v{T+3}, 3, v{T+3}           ; token*8
    v_add_u32 v{T+4}, s43, v{T+2}
    v_lshlrev_b32 v{T+4}, 3, v{T+4}
    s_lshl_b32 s14, s44, 5
    v_add_u32 v{T+5}, s14, v{T+2}
    v_lshlrev_b32 v{T+5}, 2, v{T+5}           ; feature*4
    ds_write_b64 v{T+3}, v[{T}:{T+1}] offset:512
    ds_write_b32 v{T+5}, v{VCS}
    v_lshrrev_b32 v{T+6}, 5, v0
    v_lshlrev_b32 v{T+6}, 4, v{T+6}           ; hh*16
    s_lshl_b32 s14, s44, 7
    s_lshl_b32 s15, s45, 7
    v_add_u32 v{T+7}, s14, v{T+6}
    v_add_u32 v{T+8}, s15, v{T+6}
    s_waitcnt lgkmcnt(0)
    s_barrier
    ds_read_b64 v[{T+10}:{T+11}], v{T+4} offset:512
    """)
    CS = 128
    for fi in range(2):
        for q in range(4):
            a(f"ds_read_b128 {vr(CS+fi*16+q*4,4)}, v{T+7+fi} offset:{q*32}")
    a(f"""
    v_lshlrev_b32 v{T+9}, 4, v0
    s_lshl_b32 s14, s16, 2          ; 4mt
    s_lshr_b32 s15, s42, 5
    s_add_u32 s46, s14, s15
    s_xor_b32 s47, s46, 1
    s_mul_i32 s46, s46, 122880
    s_mul_i32 s47, s47, 122880
    s_lshl_b32 s14, s17, 13         ; nt*16*512
    s_lshl_b32 s15, s44, 11
    s_add_u32 s48, s14, s15
    s_lshl_b32 s15, s45, 11
    s_add_u32 s49, s14, s15
    s_waitcnt lgkmcnt(0)
    """)
    P = 160
    n = 0
    for fi in range(2):
        for ti in range(2):
            ac = ACC + (fi*2+ti)*16
            mr = T if ti == 0 else T+10
            pb = P + (n % 2) * 8
            for k in range(8):
                a(f"v_pk_fma_f32 {vr(ac+2*k,2)}, {vr(CS+fi*16+2*k,2)}, {vr(mr,2)}, {vr(ac+2*k,2)} op_sel_hi:[1,0,1]")
            for k in range(8):
                a(f"v_pk_mul_f32 {vr(ac+2*k,2)}, {vr(ac+2*k,2)}, {vr(mr,2)} op_sel:[0,1] op_sel_hi:[1,1]")
            for k in range(8):
                a(f"v_cvt_pk_bf16_f32 v{pb+k}, v{ac+2*k}, v{ac+2*k+1}")
            a(f"s_add_u32 s14, s{46+ti}, s{48+fi}")
            a("s_nop 0")
            for (x, y) in ((0,2),(1,3),(4,6),(5,7)):
                a(f"v_permlane32_swap_b32 v{pb+x}, v{pb+y}")
            a(f"buffer_store_dwordx4 {vr(pb,4)}, v{T+9}, s[28:31], s14 offen")
            a(f"buffer_store_dwordx4 {vr(pb+4,4)}, v{T+9}, s[28:31], s14 offen offset:1024")
            n += 1
    a("s_endpgm")
    a.label("L_k1_aux")
    a(f"""
    s_and_b32 s14, s19, 1          ; mat
    s_lshr_b32 s15, s19, 1         ; rh
    v_mul_u32_u24 v2, 0x4925, v0
    v_lshrrev_b32 v2, 18, v2       ; rr
    v_mul_u32_u24 v3, 14, v2
    v_sub_u32 v3, v0, v3           ; c
    s_mul_i32 s18, s15, 320
    v_add_u32 v4, s18, v2
    v_mul_u32_u24 v4, 3456, v4
    v_lshl_add_u32 v4, v3, 4, v4
    s_mul_i32 s18, s16, 224
    v_add_u32 v4, s18, v4
    v_mov_b32 v5, {BIG}
    v_cmp_gt_u32 vcc, 56, v0
    s_waitcnt lgkmcnt(0)
    s_cmp_eq_u32 s14, 0
    v_cndmask_b32 v4, v5, v4, vcc
    s_cselect_b32 s20, s8, s10
    s_cselect_b32 s21, s9, s11
    s_mov_b32 s22, 2211840
    s_mov_b32 s23, 0x00020000
    s_mov_b32 s36, 0x00003F80
    s_mov_b32 s37, 0x3F800000
    s_mov_b32 s35, 0
    """)
    srd(a, 28, 12, 13, 112*256, WS_CS)
    for i in range(8): a(f"v_mov_b32 v{8+i}, 0")
    a.label("L_k1_auxloop")
    for i in range(16):
        a(f"buffer_load_dwordx4 {vr(64+4*i,4)}, v4, s[20:23], s35 offen")
        a("s_add_u32 s35, s35, 13824")
    for i in range(16):
        a(f"s_waitcnt vmcnt({15-i})")
        for d in range(4):
            a(f"v_dot2c_f32_bf16 v{8+2*d}, s36, v{64+4*i+d}")
            a(f"v_dot2c_f32_bf16 v{9+2*d}, s37, v{64+4*i+d}")
    a(f"""
    s_cmp_lt_u32 s35, {80*13824}
    s_cbranch_scc1 L_k1_auxloop
    v_lshlrev_b32 v16, 5, v0
    s_lshl_b32 s18, s19, 11
    v_add_u32 v16, s18, v16         ; w*2048 + lane*32
    s_nop 2
    ds_write_b128 v16, v[8:11]
    ds_write_b128 v16, v[12:15] offset:16
    s_lshl_b32 s18, s19, 6
    v_add_u32 v17, s18, v0          ; tau
    v_cmp_le_u32 vcc, 112, v17
    v_subrev_u32 v18, 112, v17
    s_nop 0
    v_cndmask_b32 v18, v17, v18, vcc   ; col
    v_cndmask_b32 v19, 0, 1, vcc       ; mat
    v_lshlrev_b32 v20, 2, v18          ; col*4  (= (col/8)*32 + (col%8)*4)
    v_lshl_add_u32 v20, v19, 11, v20
    s_waitcnt lgkmcnt(0)
    s_barrier
    """)
    k = 0
    for rh in range(2):
        for rr in range(4):
            a(f"ds_read_b32 v{24+k}, v20 offset:{rh*4096 + rr*14*32}")
            k += 1
    a(f"""
    v_lshrrev_b32 v21, 4, v18
    s_mul_i32 s18, s16, 7
    v_add_u32 v21, s18, v21            ; tile
    v_lshlrev_b32 v21, 8, v21
    v_and_b32 v22, 15, v18
    v_lshl_add_u32 v22, v19, 4, v22
    v_lshl_add_u32 v21, v22, 3, v21
    v_cmp_gt_u32 vcc, 224, v17
    v_mov_b32 v5, {BIG}
    s_waitcnt lgkmcnt(0)
    v_cndmask_b32 v21, v5, v21, vcc
    v_add_f32 v24, v24, v25
    v_add_f32 v26, v26, v27
    v_add_f32 v28, v28, v29
    v_add_f32 v30, v30, v31
    v_add_f32 v24, v24, v26
    v_add_f32 v28, v28, v30
    v_add_f32 v24, v24, v28
    """)
    rnd_bf16(a, 25, 24)
    a("v_sub_f32 v26, v24, v25")
    rnd_bf16(a, 27, 26)
    a("""
    v_sub_f32 v28, v26, v27
    v_cvt_pk_bf16_f32 v30, v24, v26
    v_cvt_pk_bf16_f32 v31, v28, 0
    buffer_store_dwordx2 v[30:31], v21, s[28:31], 0 offen
    """)
    a.label("L_k1_done")
    a("s_endpgm")
    return kernel_desc("qkv_kernel", 176, 64)

def kernels():
    from gen_k2 import gen_k2
    ks = [("qkv_kernel", gen_k1, 256, 256, 163840), ("attn_kernel", gen_k2, 256, 512, 65536)]
    try:
        from gen_k3 import gen_k3
        ks.append(("wo_kernel", gen_k3, 256, 256, 102400))
        from gen_k4 import gen_k4
        ks.append(("gu_kernel", gen_k4, 256, 256, 144640))
        from gen_k5 import gen_k5
        ks.append(("dn_kernel", gen_k5, 256, 256, 143360))
    except ImportError:
        pass
    return ks

def main(out):
    a = Asm()
    KERNELS = kernels()
    hdr = open('sequential_preLN__sliding_block__geglu_ffn__prompt.s.ref').read().split('\n')
    for l in hdr:
        if l.startswith(';') and '@launch' not in l and 'Override' not in l and 'grid=ceil' not in l:
            a.raw(l)
    for (n, g, grid, blk, lds) in KERNELS:
        a.raw(f"; @launch kernel={n} grid=({grid},1,1) block=({blk},1,1) lds={lds}")
    a.raw('.amdgcn_target "amdgcn-amd-amdhsa--gfx950"\n.text')
    descs = []
    for (n, g, grid, blk, lds) in KERNELS:
        descs.append(g(a))
    a.raw('.section .rodata,"a"')
    for d in descs: a.raw(d)
    open(out, 'w').write(a.text())

if __name__ == '__main__':
    main(sys.argv[1] if len(sys.argv) > 1 else 'k.s')
```

```python
import os
class Asm:
    def __init__(self):
        self.L = []
    def __call__(self, s):
        for line in s.strip('\n').split('\n'):
            line = line.strip()
            if line:
                self.L.append("    " + line)
    def label(self, l):
        self.L.append(l + ":")
    def raw(self, s):
        self.L.append(s)
    def nop(self, n):
        while n > 0:
            k = min(n, 16)
            self(f"s_nop {k-1}")
            n -= k
    def text(self):
        return "\n".join(self.L) + "\n"

def vr(b, n=1):
    return f"v{b}" if n == 1 else f"v[{b}:{b+n-1}]"
def sr(b, n=1):
    return f"s{b}" if n == 1 else f"s[{b}:{b+n-1}]"

def kernel_begin(a, name):
    a.raw(f".globl {name}\n.p2align 8\n.type {name},@function\n{name}:")

def kernel_desc(name, vgpr, sgpr=96, accum=None):
    if os.environ.get('STAMP') or os.environ.get('TL'): sgpr = 102
    accum = accum if accum is not None else min(256, (vgpr + 3) // 4 * 4)
    return f""".p2align 6
.amdhsa_kernel {name}
  .amdhsa_next_free_vgpr {vgpr}
  .amdhsa_next_free_sgpr {sgpr}
  .amdhsa_accum_offset {accum}
  .amdhsa_group_segment_fixed_size 0
  .amdhsa_kernarg_size 80
  .amdhsa_user_sgpr_count 2
  .amdhsa_user_sgpr_kernarg_segment_ptr 1
  .amdhsa_system_sgpr_workgroup_id_x 1
.end_amdhsa_kernel
"""

def srd(a, d, base_lo, base_hi, nrec, off=None):
    if off is None:
        a(f"s_mov_b32 s{d}, s{base_lo}")
        a(f"s_mov_b32 s{d+1}, s{base_hi}")
    else:
        a(f"s_add_u32 s{d}, s{base_lo}, {off}")
        a(f"s_addc_u32 s{d+1}, s{base_hi}, 0")
    a(f"s_mov_b32 s{d+2}, {nrec}")
    a(f"s_mov_b32 s{d+3}, 0x00020000")


import os
STAMP = bool(os.environ.get('STAMP'))
WS_DBG = 0x3000000
def stamp(a, n):
    if STAMP:
        a(f"s_memtime s[{80+2*n}:{81+2*n}]")
def stamp_rt(a, n):
    if STAMP:
        a(f"s_memrealtime s[{80+2*n}:{81+2*n}]")
def stamp_dump(a, kidx, nst, wsreg, wave_sgpr, waves):
    if not STAMP: return
    a("s_waitcnt vmcnt(0) lgkmcnt(0)")
    a(f"s_memtime s[{80+2*nst}:{81+2*nst}]")
    a("s_mov_b64 exec, 1")
    a(f"s_add_u32 s76, s{wsreg}, {WS_DBG + kidx*0x100000}")
    a(f"s_addc_u32 s77, s{wsreg+1}, 0")
    a("s_mov_b32 s78, 0x100000")
    a("s_mov_b32 s79, 0x00020000")
    a(f"s_mul_i32 s75, s2, {waves}")
    a(f"s_add_u32 s75, s75, s{wave_sgpr}")
    a("s_lshl_b32 s75, s75, 6")
    a("v_mov_b32 v1, 0")
    a("s_waitcnt lgkmcnt(0)")
    for i in range(nst+1):
        a(f"v_mov_b32 v2, s{80+2*i}")
        a(f"buffer_store_dword v2, v1, s[76:79], s75 offen offset:{4*i}")


TL = bool(os.environ.get('TL'))
def tl_start(a):
    if TL:
        a("s_memrealtime s[96:97]")
        a("s_load_dwordx2 s[98:99], s[0:1], 64")
def tl_end(a, kidx, wave_sgpr):
    if not TL: return
    a("s_waitcnt vmcnt(0) lgkmcnt(0)")
    a("s_memrealtime s[94:95]")
    a(f"s_cmp_lg_u32 s{wave_sgpr}, 0")
    a(f"s_cbranch_scc1 L_tl_{kidx}")
    a("s_mov_b32 s93, 0x7fffffff")
    a("s_cmp_eq_u32 s2, 0")
    a(f"s_cselect_b32 s93, {kidx*8}, s93")
    a("s_mov_b64 exec, 1")
    a(f"s_sub_u32 s88, s98, {512*kidx}")
    a("s_subb_u32 s89, s99, 0")
    a("s_mov_b32 s90, 2304")
    a("s_mov_b32 s91, 0x00020000")
    a("s_waitcnt lgkmcnt(0)")
    a("v_mov_b32 v1, 0")
    a("v_mov_b32 v2, s96")
    a("v_mov_b32 v3, s94")
    a("buffer_store_dwordx2 v[2:3], v1, s[88:91], s93 offen")
    a("buffer_store_dwordx2 v[2:3], v1, s[88:91], s93 offen offset:2048")
    a("s_mov_b32 s93, 0x7fffffff")
    a("s_cmp_eq_u32 s2, 201")
    a(f"s_cselect_b32 s93, {40+kidx*4}, s93")
    a("buffer_store_dword v3, v1, s[88:91], s93 offen")
    a("buffer_store_dword v3, v1, s[88:91], s93 offen offset:2048")
    a.label(f"L_tl_{kidx}")
```

```python
import sys, os, struct
from asmlib import *

WS_QKV = 0
WS_O   = 0x800000
WS_H   = 0xB00000
WS_ST  = 0xE00000
WS_CS  = 0xE40000
WS_G   = 0x1000000
WS_GUP = 0x1800000
WS_WDP = 0x1D00000
WS_WOP = 0x1F80000
WS_END = 0x2080000
BIG = 0x40000000

def fbits(x): return struct.unpack('<I', struct.pack('<f', x))[0]

def rnd_bf16(a, d, s):
    a(f"v_cvt_pk_bf16_f32 v{d}, v{s}, v{s}")
    a(f"v_lshlrev_b32 v{d}, 16, v{d}")

def ln_finish(a, mean, var, t):
    rnd_bf16(a, mean, mean)
    rnd_bf16(a, var, var)
    a(f"v_sub_f32 v{mean}, 0, v{mean}")
    a(f"v_add_f32 v{var}, 0x3727c5ac, v{var}")
    rnd_bf16(a, var, var)
    a(f"v_sqrt_f32 v{var}, v{var}")
    a("s_nop 0")
    rnd_bf16(a, var, var)

def helper_loop(a, tag, nitems, N, NS, P, SLOT, soff, adv, slds, voff, srdreg, scnt, stmp, after_prologue=None):
    def issue():
        for n in range(nitems):
            a(f"s_add_u32 m0, s{slds}, {n*1024}")
            if n == 0:
                a(f"s_add_u32 s{scnt}, s{scnt}, 1")
            else:
                a(f"s_add_u32 s{soff[n-1]}, s{soff[n-1]}, s{stmp}")
            a(f"buffer_load_dwordx4 v{voff}, s[{srdreg}:{srdreg+3}], s{soff[n]} offen lds")
            if n == 0:
                a(f"s_cmp_eq_u32 s{scnt}, {N}")
                a(f"s_cselect_b32 s{stmp}, {BIG}, {adv}")
        a(f"s_add_u32 s{soff[-1]}, s{soff[-1]}, s{stmp}")
        a(f"s_add_u32 s{slds}, s{slds}, {SLOT}")
        a(f"s_cmp_ge_u32 s{slds}, s{slds+1}")
        a(f"s_cselect_b32 s{stmp}, {SLOT*NS}, 0")
        a(f"s_sub_u32 s{slds}, s{slds}, s{stmp}")
    a(f"s_mov_b32 s{scnt}, 0")
    issued = 0
    for s in range(P):
        issue(); issued += 1
    if after_prologue: after_prologue()
    a(f"s_waitcnt vmcnt({(issued-1)*nitems})")
    a("s_barrier")
    i = 0
    while True:
        allowed = i + NS - 1
        k = min(2, allowed - issued)
        if k == 1: break
        for _ in range(k):
            issue(); issued += 1
        a(f"s_waitcnt vmcnt({(issued-(i+2))*nitems})")
        a("s_barrier")
        i += 1
    lead = issued + 1 - (i + 2)
    assert lead*nitems <= 63 and i < N
    a.label(f"L_{tag}_hl")
    issue()
    a(f"s_cmp_lt_u32 s{scnt}, {N + lead + 1}")
    a(f"s_waitcnt vmcnt({lead*nitems})")
    a("s_barrier")
    a(f"s_cbranch_scc1 L_{tag}_hl")
```

```python
from common import *

def gen_k1(a):
    kernel_begin(a, "qkv_kernel")
    a("s_cmp_ge_u32 s2, 256")
    a("s_cbranch_scc1 L_k1_done")
    code_prefetch(a, "qkv_kernel", 60, 56)
    tl_start(a); stamp(a, 0); stamp_rt(a, 5)
    a("s_load_dwordx4 s[4:7], s[0:1], 0")
    a("s_load_dwordx4 s[8:11], s[0:1], 32")
    a("s_load_dwordx2 s[12:13], s[0:1], 72")
    a("""
    s_and_b32 s14, s2, 7
    s_lshr_b32 s15, s2, 3
    s_lshr_b32 s16, s14, 1
    s_lshl_b32 s16, s16, 2
    s_and_b32 s17, s15, 3
    s_add_u32 s16, s16, s17        ; mt
    s_and_b32 s17, s14, 1
    s_lshl_b32 s17, s17, 3
    s_lshr_b32 s18, s15, 2
    s_add_u32 s17, s17, s18        ; nt
    v_lshrrev_b32 v1, 6, v0
    v_and_b32 v0, 63, v0           ; lane
    v_readfirstlane_b32 s19, v1    ; wave
    s_cmp_eq_u32 s17, 15
    s_cbranch_scc1 L_k1_aux
    s_cmp_ge_u32 s19, 4
    s_cbranch_scc1 L_k1_helper
    """)
    SLOT = 32768; NS = 5
    RDA, RDW = 10, 18
    VCS = 22
    T = 26
    ACC = 64
    F = [128, 144]
    a(f"""
    s_lshr_b32 s40, s19, 1         ; wm
    s_and_b32 s41, s19, 1          ; wn
    v_and_b32 v{T}, 31, v0         ; t
    v_lshrrev_b32 v{T+1}, 5, v0    ; hh
    v_lshrrev_b32 v{T+2}, 1, v{T}
    v_and_b32 v{T+2}, 7, v{T+2}    ; f
    s_lshl_b32 s42, s40, 6
    s_add_u32 s43, s42, 32
    v_add_u32 v{T+3}, s42, v{T}
    v_lshlrev_b32 v{T+3}, 7, v{T+3}
    """)
    for ks in range(4):
        a(f"""
        v_add_u32 v{T+5}, {2*ks}, v{T+1}
        v_xor_b32 v{T+5}, v{T+5}, v{T+2}
        v_lshl_add_u32 v{RDA+ks}, v{T+5}, 4, v{T+3}
        """)
    a(f"""
    v_bfe_u32 v{T}, v0, 2, 2        ; r
    v_and_b32 v{T+2}, 3, v0         ; c
    v_bfe_u32 v{T+3}, v0, 4, 1      ; G&1
    v_lshl_add_u32 v{T+4}, v{T+1}, 3, v{T}     ; 8hh + r
    v_lshlrev_b32 v{T+4}, 8, v{T+4}
    v_add_u32 v{T+4}, 16384, v{T+4}
    v_lshlrev_b32 v{T+5}, 3, v{T+2}
    v_add_u32 v{T+4}, v{T+4}, v{T+5}
    v_lshl_add_u32 v{T+4}, v{T+3}, 5, v{T+4}
    s_lshl_b32 s14, s41, 1
    s_add_u32 s44, s14, s40
    s_xor_b32 s45, s44, 1
    v_xor_b32 v{T+5}, s44, v{T}
    v_lshl_add_u32 v{RDW}, v{T+5}, 6, v{T+4}
    v_xor_b32 v{T+5}, s45, v{T}
    v_lshl_add_u32 v{RDW+1}, v{T+5}, 6, v{T+4}
    v_mov_b32 v{VCS}, 0
    v_mov_b32 v{VCS+1}, 0
    s_mov_b32 s37, 0xffff0000
    s_mov_b32 s32, 0
    s_mov_b32 s38, 0
    """)
    for i in range(64):
        a(f"v_mov_b32 v{ACC+i}, 0")
    def reads(ks, fb):
        b = F[fb]
        return [f"ds_read_b128 {vr(b,4)}, v{RDA+ks}",
                f"ds_read_b64_tr_b16 {vr(b+8,2)}, v{RDW} offset:{ks*4096}",
                f"ds_read_b64_tr_b16 {vr(b+10,2)}, v{RDW} offset:{ks*4096+1024}",
                f"ds_read_b128 {vr(b+4,4)}, v{RDA+ks} offset:4096",
                f"ds_read_b64_tr_b16 {vr(b+12,2)}, v{RDW+1} offset:{ks*4096}",
                f"ds_read_b64_tr_b16 {vr(b+14,2)}, v{RDW+1} offset:{ks*4096+1024}"]
    def kstep(fb, nks, post=()):
        b = F[fb]
        rd = reads(nks, 1-fb)
        post = list(post)
        waits = [3, 4, 4, None]
        q = 0
        for fi in range(2):
            for ti in range(2):
                ac = ACC + (fi*2+ti)*16
                if waits[q] is not None: a(f"s_waitcnt lgkmcnt({waits[q]})")
                a(f"v_mfma_f32_32x32x16_bf16 {vr(ac,16)}, {vr(b+8+4*fi,4)}, {vr(b+4*ti,4)}, {vr(ac,16)}")
                if q < 3:
                    a(rd[2*q]); a(rd[2*q+1])
                if not os.environ.get('K1_NOCS'):
                    a(f"v_lshlrev_b32 v{T+2*(q&1)}, 16, v{b+8+q}")
                    a(f"v_and_b32 v{T+1+2*(q&1)}, s37, v{b+8+q}")
                    a(f"v_add_f32 v{VCS}, v{VCS}, v{T+2*(q&1)}")
                    a(f"v_add_f32 v{VCS+1}, v{VCS+1}, v{T+1+2*(q&1)}")
                if q == 3:
                    for p in post: a(p)
                q += 1
    stamp(a, 1)
    a("s_barrier")
    stamp(a, 2)
    if STAMP: a("s_waitcnt lgkmcnt(0)")
    for r in reads(0, 0): a(r)
    a.label("L_k1_loop")
    a(f"""
    s_add_u32 s39, s38, {SLOT}
    s_cmp_eq_u32 s39, {SLOT*NS}
    s_cselect_b32 s39, 0, s39
    s_sub_u32 s33, s39, s38
    s_mov_b32 s38, s39
    """)
    kstep(0, 1, [f"v_add_u32 v{RDA+1}, s33, v{RDA+1}", f"v_add_u32 v{RDA}, s33, v{RDA}"])
    kstep(1, 2, [f"v_add_u32 v{RDA+2}, s33, v{RDA+2}"])
    kstep(0, 3, [f"v_add_u32 v{RDA+3}, s33, v{RDA+3}", f"v_add_u32 v{RDW}, s33, v{RDW}", f"v_add_u32 v{RDW+1}, s33, v{RDW+1}"])
    a("s_barrier")
    kstep(1, 0, ["s_add_u32 s32, s32, 1", "s_cmp_lt_u32 s32, 10"])
    a("s_cbranch_scc1 L_k1_loop")
    stamp(a, 3)
    a(f"""
    v_add_f32 v{VCS}, v{VCS}, v{VCS+1}
    v_and_b32 v{T+2}, 31, v0
    v_mov_b32 v{T}, v{VCS}
    s_lshl_b32 s14, s44, 5
    v_add_u32 v{T+5}, s14, v{T+2}
    v_permlane32_swap_b32 v{VCS}, v{T}
    v_lshlrev_b32 v{T+5}, 2, v{T+5}           ; feature*4
    v_add_u32 v{T+3}, s42, v{T+2}
    v_add_f32 v{VCS}, v{VCS}, v{T}
    v_lshlrev_b32 v{T+3}, 3, v{T+3}           ; token*8
    s_waitcnt lgkmcnt(0)
    s_barrier
    ds_write_b32 v{T+5}, v{VCS}
    v_lshrrev_b32 v{T+6}, 5, v0
    v_lshlrev_b32 v{T+6}, 4, v{T+6}           ; hh*16
    s_lshl_b32 s14, s44, 7
    s_lshl_b32 s15, s45, 7
    v_add_u32 v{T+7}, s14, v{T+6}
    v_add_u32 v{T+8}, s15, v{T+6}
    s_waitcnt lgkmcnt(0)
    s_barrier
    ds_read_b64 v[{T}:{T+1}], v{T+3} offset:512
    ds_read_b64 v[{T+10}:{T+11}], v{T+3} offset:768
    """)
    CS = 128
    for fi in range(2):
        for q in range(4):
            a(f"ds_read_b128 {vr(CS+fi*16+q*4,4)}, v{T+7+fi} offset:{q*32}")
    srd(a, 28, 12, 13, 64*122880, None)
    a(f"""
    v_lshlrev_b32 v{T+9}, 4, v0
    s_lshl_b32 s14, s16, 2
    s_lshl_b32 s15, s40, 1
    s_add_u32 s46, s14, s15
    s_mul_i32 s46, s46, 122880
    s_add_u32 s47, s46, 122880
    s_lshl_b32 s14, s17, 13
    s_lshl_b32 s15, s44, 11
    s_add_u32 s48, s14, s15
    s_lshl_b32 s15, s45, 11
    s_add_u32 s49, s14, s15
    """)
    P = 160
    n = 0
    for fi in range(2):
        a(f"s_waitcnt lgkmcnt({4 if fi == 0 else 0})")
        for ti in range(2):
            ac = ACC + (fi*2+ti)*16
            mr = T if ti == 0 else T+10
            pb = P + (n % 2) * 8
            for k in range(8):
                a(f"v_pk_fma_f32 {vr(ac+2*k,2)}, {vr(CS+fi*16+2*k,2)}, {vr(mr,2)}, {vr(ac+2*k,2)} op_sel_hi:[1,0,1]")
            for k in range(8):
                a(f"v_pk_mul_f32 {vr(ac+2*k,2)}, {vr(ac+2*k,2)}, {vr(mr,2)} op_sel:[0,1] op_sel_hi:[1,1]")
            for k in range(8):
                a(f"v_cvt_pk_bf16_f32 v{pb+k}, v{ac+2*k}, v{ac+2*k+1}")
            a(f"s_add_u32 s14, s{46+ti}, s{48+fi}")
            a("s_nop 0")
            for (x, y) in ((0,2),(1,3),(4,6),(5,7)):
                a(f"v_permlane32_swap_b32 v{pb+x}, v{pb+y}")
            a(f"buffer_store_dwordx4 {vr(pb,4)}, v{T+9}, s[28:31], s14 offen")
            a(f"buffer_store_dwordx4 {vr(pb+4,4)}, v{T+9}, s[28:31], s14 offen offset:1024")
            n += 1
    stamp(a, 4); stamp_rt(a, 6)
    stamp_dump(a, 0, 7, 12, 19, 8)
    tl_end(a, 0, 19)
    a("s_endpgm")
    a.label("L_k1_helper")
    VA, VW = 2, 6
    RX = 10
    SM = 14
    X = 48
    a(f"""
    s_sub_u32 s19, s19, 4
    v_lshrrev_b32 v{T}, 3, v0
    s_lshl_b32 s14, s19, 5
    v_add_u32 v{T}, s14, v{T}
    v_mul_u32_u24 v{T}, 1280, v{T}
    v_and_b32 v{T+1}, 7, v0
    v_lshrrev_b32 v{T+2}, 4, v0
    v_xor_b32 v{T+3}, v{T+1}, v{T+2}
    v_xor_b32 v{T+4}, 4, v{T+3}
    v_lshl_add_u32 v{VA}, v{T+3}, 4, v{T}
    v_lshl_add_u32 v{VA+1}, v{T+4}, 4, v{T}
    v_add_u32 v{VA+1}, 10240, v{VA+1}
    v_add_u32 v{VA+2}, 20480, v{VA}
    v_add_u32 v{VA+3}, 20480, v{VA+1}
    s_lshl_b32 s14, s19, 4
    v_add_u32 v{T}, s14, v{T+2}
    v_mul_u32_u24 v{T}, 3840, v{T}
    v_and_b32 v{T+1}, 15, v0
    v_lshlrev_b32 v{T+3}, 2, v{T+2}
    v_xor_b32 v{T+1}, v{T+1}, v{T+3}
    v_lshl_add_u32 v{VW}, v{T+1}, 4, v{T}
    v_add_u32 v{VW+1}, 15360, v{VW}
    v_add_u32 v{VW+2}, 30720, v{VW}
    v_add_u32 v{VW+3}, 46080, v{VW}
    s_mul_i32 s14, s16, 163840
    s_lshl_b32 s15, s17, 8
    s_lshl_b32 s34, s19, 12
    s_mov_b32 s35, 0
    s_mov_b32 s36, 0
    s_waitcnt lgkmcnt(0)
    """)
    srd(a, 20, 4, 5, 163840, "s14")
    srd(a, 24, 6, 7, 0, "s15")
    a("s_sub_u32 s26, 2457600, s15")
    def dma_list():
        out = []
        for j in range(4):
            out.append((f"s_add_u32 m0, s34, {j*1024}", f"buffer_load_dwordx4 v{VA+j}, s[20:23], s35 offen lds"))
            out.append((f"s_add_u32 m0, s34, {16384+j*1024}", f"buffer_load_dwordx4 v{VW+j}, s[24:27], s36 offen lds"))
        return out
    adv = f"""
    s_add_u32 s34, s34, {SLOT}
    s_sub_u32 s39, s34, {SLOT*NS}
    s_cmp_ge_u32 s34, {SLOT*NS}
    s_cselect_b32 s34, s39, s34
    s_add_u32 s35, s35, 128
    s_add_u32 s36, s36, 245760
    """
    def issue_stage():
        for m, l in dma_list():
            a(m); a("s_nop 0"); a(l)
        a(adv)
    issue_stage(); issue_stage()
    a(f"""
    v_and_b32 v{T}, 31, v0
    v_lshrrev_b32 v{T+1}, 5, v0
    v_lshrrev_b32 v{T+2}, 1, v{T}
    v_and_b32 v{T+2}, 7, v{T+2}
    s_lshl_b32 s42, s19, 5
    v_add_u32 v{T+3}, s42, v{T}
    v_lshlrev_b32 v{T+8}, 3, v{T+3}       ; token*8
    v_lshlrev_b32 v{T+3}, 7, v{T+3}
    """)
    for ks in range(4):
        a(f"""
        v_add_u32 v{T+5}, {2*ks}, v{T+1}
        v_xor_b32 v{T+5}, v{T+5}, v{T+2}
        v_lshl_add_u32 v{RX+ks}, v{T+5}, 4, v{T+3}
        """)
    for i in range(4): a(f"v_mov_b32 v{SM+i}, 0")
    a("""
    s_mov_b32 s37, 0xffff0000
    s_mov_b32 s32, 0
    s_mov_b32 s38, 0
    s_waitcnt vmcnt(8)
    s_barrier               ; B(-1)
    """)
    issue_stage()
    a.label("L_k1_hloop")
    for ks in range(4): a(f"ds_read_b128 {vr(X+4*ks,4)}, v{RX+ks}")
    a(f"""
    s_add_u32 s39, s38, {SLOT}
    s_cmp_eq_u32 s39, {SLOT*NS}
    s_cselect_b32 s39, 0, s39
    s_sub_u32 s33, s39, s38
    s_mov_b32 s38, s39
    s_cmp_lt_u32 s32, 7
    s_cselect_b32 s35, s35, {BIG}
    s_cselect_b32 s36, s36, {BIG}
    """)
    for ks in range(4): a(f"v_add_u32 v{RX+ks}, s33, v{RX+ks}")
    dl = dma_list()
    for d in range(16):
        if d % 4 == 0: a(f"s_waitcnt lgkmcnt({3 - d//4})")
        if d % 2 == 0: a(dl[d//2][0])
        t0 = T + 2*(d & 1)
        a(f"v_lshlrev_b32 v{t0}, 16, v{X+d}")
        if d % 2 == 0: a(dl[d//2][1])
        if os.environ.get('K1_NOROW'): continue
        a(f"v_and_b32 v{t0+1}, s37, v{X+d}")
        a(f"v_add_f32 v{SM}, v{SM}, v{t0}")
        a(f"v_add_f32 v{SM+1}, v{SM+1}, v{t0+1}")
        a(f"v_fmac_f32 v{SM+2}, v{t0}, v{t0}")
        a(f"v_fmac_f32 v{SM+3}, v{t0+1}, v{t0+1}")
    a(adv)
    a("""
    s_add_u32 s32, s32, 1
    s_cmp_lt_u32 s32, 10
    s_waitcnt vmcnt(16)
    s_barrier               ; B(i)
    s_cbranch_scc1 L_k1_hloop
    """)
    a(f"""
    v_add_f32 v{SM}, v{SM}, v{SM+1}
    v_add_f32 v{SM+2}, v{SM+2}, v{SM+3}
    v_mov_b32 v{T}, v{SM}
    v_mov_b32 v{T+1}, v{SM+2}
    s_nop 1
    v_permlane32_swap_b32 v{SM}, v{T}
    v_permlane32_swap_b32 v{SM+2}, v{T+1}
    s_nop 1
    v_add_f32 v{SM}, v{SM}, v{T}
    v_add_f32 v{SM+1}, v{SM+2}, v{T+1}
    v_mul_f32 v{SM}, {fbits(1/640):#x}, v{SM}
    v_mul_f32 v{SM+1}, {fbits(1/640):#x}, v{SM+1}
    v_fma_f32 v{SM+1}, -v{SM}, v{SM}, v{SM+1}
    v_max_f32 v{SM+1}, 0, v{SM+1}
    """)
    ln_finish(a, SM, SM+1, T)
    a(f"""
    v_rcp_f32 v{SM+1}, v{SM+1}
    s_waitcnt vmcnt(0)
    s_barrier               ; E0
    ds_write_b64 v{T+8}, v[{SM}:{SM+1}] offset:512
    s_waitcnt lgkmcnt(0)
    s_barrier               ; E1
    s_endpgm
    """)
    a.label("L_k1_aux")
    a(f"""
    s_and_b32 s14, s19, 1          ; mat
    s_lshr_b32 s15, s19, 1
    v_mul_u32_u24 v2, 0x4925, v0
    v_lshrrev_b32 v2, 18, v2
    v_mul_u32_u24 v3, 14, v2
    v_sub_u32 v3, v0, v3           ; c
    s_mul_i32 s18, s15, 160
    v_add_u32 v4, s18, v2
    v_mul_u32_u24 v4, 3456, v4
    v_lshl_add_u32 v4, v3, 4, v4
    s_mul_i32 s18, s16, 224
    v_add_u32 v4, s18, v4
    v_mov_b32 v5, {BIG}
    v_cmp_gt_u32 vcc, 56, v0
    s_waitcnt lgkmcnt(0)
    s_cmp_eq_u32 s14, 0
    v_cndmask_b32 v4, v5, v4, vcc
    s_cselect_b32 s20, s8, s10
    s_cselect_b32 s21, s9, s11
    s_mov_b32 s22, 2211840
    s_mov_b32 s23, 0x00020000
    s_mov_b32 s36, 0x00003F80
    s_mov_b32 s37, 0x3F800000
    s_mov_b32 s35, 0
    """)
    srd(a, 28, 12, 13, 112*256, WS_CS)
    for i in range(8): a(f"v_mov_b32 v{8+i}, 0")
    a.label("L_k1_auxloop")
    for i in range(20):
        a(f"buffer_load_dwordx4 {vr(64+4*i,4)}, v4, s[20:23], s35 offen")
        a("s_add_u32 s35, s35, 13824")
    for i in range(20):
        a(f"s_waitcnt vmcnt({19-i})")
        for d in range(4):
            a(f"v_dot2c_f32_bf16 v{8+2*d}, s36, v{64+4*i+d}")
            a(f"v_dot2c_f32_bf16 v{9+2*d}, s37, v{64+4*i+d}")
    a(f"""
    s_cmp_lt_u32 s35, {40*13824}
    s_cbranch_scc1 L_k1_auxloop
    v_lshlrev_b32 v16, 5, v0
    s_lshl_b32 s18, s19, 11
    v_add_u32 v16, s18, v16
    s_nop 2
    ds_write_b128 v16, v[8:11]
    ds_write_b128 v16, v[12:15] offset:16
    s_lshl_b32 s18, s19, 6
    v_add_u32 v17, s18, v0          ; tau
    v_cmp_le_u32 vcc, 112, v17
    v_subrev_u32 v18, 112, v17
    s_nop 0
    v_cndmask_b32 v18, v17, v18, vcc
    v_cndmask_b32 v19, 0, 1, vcc
    v_lshlrev_b32 v20, 2, v18
    v_lshl_add_u32 v20, v19, 11, v20
    s_waitcnt lgkmcnt(0)
    s_barrier
    s_cmp_ge_u32 s19, 4
    s_cbranch_scc1 L_k1_done
    """)
    k = 0
    for rq in range(4):
        for rr in range(4):
            a(f"ds_read_b32 v{24+k}, v20 offset:{rq*4096 + rr*14*32}")
            k += 1
    a(f"""
    v_lshrrev_b32 v21, 4, v18
    s_mul_i32 s18, s16, 7
    v_add_u32 v21, s18, v21
    v_lshlrev_b32 v21, 8, v21
    v_and_b32 v22, 15, v18
    v_lshl_add_u32 v22, v19, 4, v22
    v_lshl_add_u32 v21, v22, 3, v21
    v_cmp_gt_u32 vcc, 224, v17
    v_mov_b32 v5, {BIG}
    s_waitcnt lgkmcnt(0)
    v_cndmask_b32 v21, v5, v21, vcc
    """)
    for st in (1, 2, 4, 8):
        for i in range(0, 16, 2*st):
            a(f"v_add_f32 v{24+i}, v{24+i}, v{24+i+st}")
    rnd_bf16(a, 25, 24)
    a("v_sub_f32 v26, v24, v25")
    rnd_bf16(a, 27, 26)
    a("""
    v_sub_f32 v28, v26, v27
    v_cvt_pk_bf16_f32 v30, v24, v26
    v_cvt_pk_bf16_f32 v31, v28, 0
    buffer_store_dwordx2 v[30:31], v21, s[28:31], 0 offen
    """)
    a.label("L_k1_done")
    a("s_endpgm")
    return kernel_desc("qkv_kernel", 176, 64)
```

```python
from common import *

def gen_k2(a):
    kernel_begin(a, "attn_kernel")
    a("s_cmp_ge_u32 s2, 256")
    a("s_cbranch_scc1 L_k2_done")
    code_prefetch(a, "attn_kernel", 92, 56)
    tl_start(a); stamp(a, 0)
    a("s_load_dwordx2 s[12:13], s[0:1], 72")
    a("s_load_dwordx2 s[66:67], s[0:1], 16")
    a("s_load_dwordx4 s[68:71], s[0:1], 32")
    a("s_load_dwordx2 s[72:73], s[0:1], 48")
    a("""
    s_and_b32 s4, s2, 7
    s_lshl_b32 s4, s4, 2
    s_bfe_u32 s5, s2, 0x20003
    s_add_u32 s4, s4, s5           ; h
    s_lshr_b32 s5, s2, 5           ; qb
    s_lshr_b32 s6, s4, 1           ; p
    s_and_b32 s7, s4, 1            ; odd
    v_lshrrev_b32 v1, 6, v0
    v_and_b32 v0, 63, v0
    v_readfirstlane_b32 s8, v1     ; wave
    """)
    RK0, RK1, RV = 2, 3, 4
    DV = 5
    Q0, Q1 = 8, 12
    KB = [16, 24, 32]
    VB = [40, 44, 48, 52]
    M = 56
    P8 = 64
    T = 72
    PKA = 90
    S = 96
    O = 240
    PACK = 65536
    a("s_mul_i32 s9, s7, 1536")
    a(f"v_mov_b32 v{T+6}, 0x1e000")
    for i in range(3):
        a(f"""
        v_add_u32 v{T}, {64*i}, v0
        v_cmp_le_u32 vcc, 96, v{T}
        v_subrev_u32 v{T+1}, 96, v{T}
        s_nop 0
        v_cndmask_b32 v{T}, v{T}, v{T+1}, vcc
        v_cndmask_b32 v{T+2}, 0, v{T+6}, vcc
        v_mul_u32_u24 v{T+1}, 43, v{T}
        v_lshrrev_b32 v{T+1}, 9, v{T+1}
        v_mul_u32_u24 v{T+3}, 12, v{T+1}
        v_sub_u32 v{T+3}, v{T}, v{T+3}
        v_lshrrev_b32 v{T+4}, 2, v{T+3}
        v_and_b32 v{T+3}, 3, v{T+3}
        v_lshl_add_u32 v{T+3}, v{T+1}, 2, v{T+3}
        v_lshl_add_u32 v{T+2}, v{T+3}, 4, v{T+2}
        v_cmp_eq_u32 vcc, 2, v{T+4}
        v_lshlrev_b32 v{T+4}, 9, v{T+4}
        v_add_u32 v{T+5}, s9, v{T+4}
        v_cndmask_b32 v{T+4}, v{T+5}, v{T+4}, vcc
        v_add_u32 v{DV+i}, v{T+2}, v{T+4}
        """)
    a(f"""
    s_lshl_b32 s10, s5, 3
    s_lshl_b32 s11, s8, 1
    s_add_u32 s14, s10, s11
    s_sub_u32 s15, s14, 8
    s_cmp_lt_u32 s14, 8
    s_cselect_b32 s14, s14, s15
    s_mul_i32 s14, s14, 122880
    s_mul_i32 s15, s6, 2560
    s_add_u32 s14, s14, s15
    s_add_u32 s16, s14, {80*512}
    s_add_u32 s17, s14, {160*512}
    s_mul_i32 s18, s8, 3072
    s_add_u32 s19, s10, s8         ; T
    s_mul_i32 s28, s19, 122880
    s_add_u32 s28, s28, s15
    s_add_u32 s29, s28, s9
    s_lshl_b32 s30, s7, 3
    s_add_u32 s28, s28, s30
    s_add_u32 s28, s28, 1024
    v_lshlrev_b32 v{T}, 4, v0
    v_cmp_gt_u32 vcc, 32, v0
    v_mov_b32 v{T+1}, {BIG}
    s_waitcnt lgkmcnt(0)
    v_cndmask_b32 v{T+1}, v{T+1}, v{T}, vcc
    """)
    srd(a, 20, 12, 13, WS_END, None)
    for i in range(3):
        a(f"s_add_u32 m0, s18, {i*1024}")
        a("s_nop 0")
        a(f"buffer_load_dwordx4 v{DV+i}, s[20:23], s16 offen lds")
    a(f"buffer_load_dwordx4 {vr(Q0,4)}, v{T}, s[20:23], s29 offen")
    a(f"buffer_load_dwordx2 {vr(Q1,2)}, v{T+1}, s[20:23], s28 offen")
    for i in range(3):
        a(f"s_add_u32 m0, s18, {24576+i*1024}")
        a("s_nop 0")
        a(f"buffer_load_dwordx4 v{DV+i}, s[20:23], s17 offen lds")
    a(f"""
    s_lshl_b32 s74, s2, 3
    s_add_u32 s74, s74, s8          ; gw
    s_mov_b32 s27, 0x00020000
    s_mov_b32 s31, 0x00020000
    s_cmp_ge_u32 s74, 1080
    s_cbranch_scc1 L_k2_pk_b
    s_mul_i32 s75, s74, 2428
    s_lshr_b32 s75, s75, 16         ; ks
    s_mul_i32 s76, s75, 27
    s_sub_u32 s76, s74, s76         ; cb
    s_mov_b32 s24, s68
    s_mov_b32 s25, s69
    s_mov_b32 s26, 2211840
    s_mov_b32 s28, s70
    s_mov_b32 s29, s71
    s_mov_b32 s30, 2211840
    s_mul_i32 s32, s75, {16*3456}
    s_lshl_b32 s36, s76, 7
    s_add_u32 s32, s32, s36         ; q=0 : gate e=0
    s_add_u32 s33, s32, {4*3456}    ; q=1 : gate e=1
    s_mov_b32 s34, s32
    s_mov_b32 s35, s33
    s_mov_b32 s36, 3456
    s_mov_b32 s37, 4
    s_mov_b32 s38, 2048             ; (G&1) stride
    s_mov_b32 s39, 512              ; (G>>1) stride
    s_mov_b32 s77, {40*1024}
    s_mov_b32 s78, {WS_GUP}
    s_branch L_k2_pk_go
L_k2_pk_b:
    s_cmp_ge_u32 s74, 1620
    s_cbranch_scc1 L_k2_pk_c
    ; ---- w_down
    s_sub_u32 s74, s74, 1080
    s_mul_i32 s75, s74, 6554
    s_lshr_b32 s75, s75, 16
    s_mul_i32 s76, s75, 10
    s_sub_u32 s76, s74, s76
    s_mov_b32 s24, s72
    s_mov_b32 s25, s73
    s_mov_b32 s26, 2211840
    s_mul_i32 s32, s75, {32*1280}
    s_add_u32 s33, s32, {8*1280}
    s_add_u32 s34, s32, {16*1280}
    s_add_u32 s35, s32, {24*1280}
    s_mov_b32 s77, {54*1024}
    s_mov_b32 s78, {WS_WDP}
    s_branch L_k2_pk_d
L_k2_pk_c:
    s_sub_u32 s74, s74, 1620
    s_mul_i32 s75, s74, 6554
    s_lshr_b32 s75, s75, 16         ; ks
    s_mul_i32 s76, s75, 10
    s_sub_u32 s76, s74, s76
    s_mov_b32 s24, s66
    s_mov_b32 s25, s67
    s_cmp_lt_u32 s74, 200
    s_cselect_b32 s26, 819200, 0
    s_cselect_b32 s78, {WS_WOP}, {BIG}
    s_mul_i32 s36, s75, 52
    s_lshr_b32 s36, s36, 8          ; ks/5
    s_mul_i32 s37, s36, 5
    s_sub_u32 s37, s75, s37         ; ks%5
    s_mul_i32 s38, s36, {160*1280}
    s_mul_i32 s39, s37, {40*1280}
    s_add_u32 s32, s38, s39
    s_add_u32 s33, s32, {8*1280}
    s_add_u32 s34, s32, {24*1280}
    s_add_u32 s35, s32, {32*1280}
    s_cmp_lt_u32 s37, 4
    s_cbranch_scc1 L_k2_pk_e
    s_add_u32 s32, s38, {16*1280}
    s_add_u32 s33, s32, {80*1280}
    s_add_u32 s34, s32, {40*1280}
    s_add_u32 s35, s32, {120*1280}
L_k2_pk_e:
    s_mov_b32 s77, {20*1024}
L_k2_pk_d:
    s_mov_b32 s28, s24
    s_mov_b32 s29, s25
    s_mov_b32 s30, s26
    s_lshl_b32 s36, s76, 7
    s_add_u32 s32, s32, s36
    s_add_u32 s33, s33, s36
    s_add_u32 s34, s34, s36
    s_add_u32 s35, s35, s36
    s_mov_b32 s36, 1280
    s_mov_b32 s37, 0
    s_mov_b32 s38, 512
    s_mov_b32 s39, 2048
L_k2_pk_go:
    v_lshrrev_b32 v{T+2}, 3, v0
    v_lshrrev_b32 v{T+3}, 5, v0
    v_mul_u32_u24 v{T+4}, s37, v{T+3}
    v_add_u32 v{T+2}, v{T+2}, v{T+4}
    v_mul_u32_u24 v{T+2}, s36, v{T+2}
    v_and_b32 v{T+4}, 7, v0
    v_lshl_add_u32 v{T+2}, v{T+4}, 4, v{T+2}
    s_lshl_b32 s79, s8, 12
    s_add_u32 s79, s79, {PACK}
    s_mov_b32 m0, s79
    v_mul_u32_u24 v{PKA}, s39, v{T+3}
    buffer_load_dwordx4 v{T+2}, s[24:27], s32 offen lds
    s_add_u32 m0, s79, 1024
    v_bfe_u32 v{T+4}, v0, 4, 1
    buffer_load_dwordx4 v{T+2}, s[24:27], s33 offen lds
    s_add_u32 m0, s79, 2048
    v_mul_u32_u24 v{T+4}, s38, v{T+4}
    buffer_load_dwordx4 v{T+2}, s[28:31], s34 offen lds
    s_add_u32 m0, s79, 3072
    v_add3_u32 v{PKA}, v{PKA}, v{T+4}, s79
    buffer_load_dwordx4 v{T+2}, s[28:31], s35 offen lds
    v_bfe_u32 v{T+4}, v0, 2, 2
    v_lshl_add_u32 v{PKA}, v{T+4}, 7, v{PKA}
    v_and_b32 v{T+4}, 3, v0
    v_lshl_add_u32 v{PKA}, v{T+4}, 3, v{PKA}
    s_lshl_b32 s76, s76, 2
    s_mul_i32 s76, s76, s77
    s_lshl_b32 s75, s75, 10
    s_add_u32 s78, s78, s76
    s_add_u32 s78, s78, s75
    """)
    a(f"""
    v_mov_b32 v{T+4}, 0x3F803F80
    v_mov_b32 v{T+5}, 0x3F803F80
    v_mov_b32 v{T+6}, 0x3F803F80
    v_mov_b32 v{T+7}, 0x3F803F80
    s_lshl_b32 s30, s8, 11
    v_add_u32 v{T+1}, s30, v{T}
    ds_write_b128 v{T+1}, {vr(T+4,4)} offset:49152
    ds_write_b128 v{T+1}, {vr(T+4,4)} offset:50176
    v_mov_b32 v{T+2}, 0x3F80
    v_cmp_gt_u32 vcc, 32, v0
    v_mov_b32 v{Q1+3}, 0
    s_nop 0
    v_cndmask_b32 v{Q1+2}, 0, v{T+2}, vcc
    """)
    for kb in KB:
        a(f"v_mov_b32 v{kb+7}, 0")
    a(f"""
    v_and_b32 v{T}, 31, v0
    v_lshrrev_b32 v{T+1}, 5, v0
    v_lshrrev_b32 v{T+2}, 2, v{T}
    v_mul_u32_u24 v{T+2}, 192, v{T+2}
    v_and_b32 v{T+3}, 3, v0
    v_lshl_add_u32 v{T+2}, v{T+3}, 4, v{T+2}
    s_mul_i32 s30, s8, 1536
    v_add_u32 v{T+2}, s30, v{T+2}
    v_lshl_add_u32 v{RK0}, v{T+1}, 6, v{T+2}
    s_lshl_b32 s31, s7, 3
    s_add_u32 s31, s31, 128
    v_add_u32 v{RK1}, s31, v{T+2}
    v_bfe_u32 v{T+4}, v0, 2, 2
    v_mul_u32_u24 v{T+5}, 192, v{T+1}
    v_lshl_add_u32 v{T+5}, v{T+4}, 4, v{T+5}
    s_add_u32 s30, s30, 24576
    v_add_u32 v{T+5}, s30, v{T+5}
    v_lshrrev_b32 v{T+6}, 1, v{T+3}
    v_lshlrev_b32 v{T+6}, 6, v{T+6}
    v_and_b32 v{T+7}, 1, v{T+3}
    v_lshl_add_u32 v{T+6}, v{T+7}, 3, v{T+6}
    v_add_u32 v{T+6}, v{T+5}, v{T+6}
    v_add_u32 v{T+7}, s31, v{T+5}
    v_mov_b32 v{T+8}, 49152
    v_cmp_eq_u32 vcc, 0, v{T+3}
    v_bfe_u32 v{T+9}, v0, 4, 1
    s_nop 0
    v_cndmask_b32 v{T+7}, v{T+8}, v{T+7}, vcc
    v_cmp_eq_u32 vcc, 0, v{T+9}
    v_lshlrev_b32 v{T+10}, 2, v{T+1}
    v_sub_u32 v{T+10}, v{T}, v{T+10}
    v_cndmask_b32 v{RV}, v{T+7}, v{T+6}, vcc
    """)
    for r in range(16):
        cr = 8*(r//4) + r % 4
        a(f"v_cmp_gt_i32 s[{32+2*r}:{33+2*r}], {cr}, v{T+10}")
    a(f"v_mov_b32 v{T}, 0xffff")
    a(f"v_mov_b32 v{T+1}, 0xffff0000")
    for k in range(8):
        a(f"v_cndmask_b32 v{M+k}, 0, v{T}, s[{32+4*k}:{33+4*k}]")
        a(f"v_cndmask_b32 v{T+2}, 0, v{T+1}, s[{34+4*k}:{35+4*k}]")
        a(f"v_or_b32 v{M+k}, v{M+k}, v{T+2}")
    C = (20 ** -0.5) * 1.4426950408889634
    a(f"s_mov_b32 s64, {fbits(C):#x}")
    stamp(a, 1)
    a("s_waitcnt vmcnt(4) lgkmcnt(0)")
    a("s_barrier")
    stamp(a, 2)
    if STAMP: a("s_waitcnt lgkmcnt(0)")
    order = [0, 8, 1, 2, 3, 4, 5, 6, 7]
    def kread(n):
        j = order[n]; kb = KB[n % 3]
        a(f"ds_read_b128 {vr(kb,4)}, v{RK0} offset:{j*1536}")
        a(f"ds_read_b64 {vr(kb+4,2)}, v{RK1} offset:{j*1536}")
        a(f"s_cmp_lt_u32 s19, {8-j}")
        a(f"s_cselect_b32 s30, 0xf149, 0")
        a(f"v_mov_b32 v{kb+6}, s30")
    MX = T
    def maxtile(j, first):
        sb = S + 16*j
        for k in range(8):
            if first and k == 0:
                a(f"v_max_f32 v{MX}, v{sb}, v{sb+1}")
            else:
                a(f"v_max3_f32 v{MX}, v{sb+2*k}, v{sb+2*k+1}, v{MX}")
    for n in range(3): kread(n)
    for n in range(9):
        j = order[n]; kb = KB[n % 3]; sb = S + 16*j
        outstanding = min(2, 8-n) * 2
        a(f"s_waitcnt lgkmcnt({outstanding})")
        a(f"v_mfma_f32_32x32x16_bf16 {vr(sb,16)}, {vr(kb,4)}, {vr(Q0,4)}, 0")
        a(f"v_mfma_f32_32x32x16_bf16 {vr(sb,16)}, {vr(kb+4,4)}, {vr(Q1,4)}, {vr(sb,16)}")
        if n + 3 < 9: kread(n+3)
        if n == 3:
            for r in range(16):
                a(f"v_cndmask_b32 v{S+r}, v{S+128+r}, v{S+r}, s[{32+2*r}:{33+2*r}]")
        if n == 4: maxtile(0, True)
        if n >= 5: maxtile(order[n-3], False)
    def vread(j, s, vb):
        for e in range(2):
            a(f"ds_read_b64_tr_b16 {vr(vb+2*e,2)}, v{RV} offset:{j*1536 + (4*s+2*e)*192}")
    vread(1, 0, VB[0]); vread(1, 1, VB[1])
    maxtile(5, False)
    maxtile(6, False)
    maxtile(7, False)
    a(f"""
    v_mov_b32 v{MX+1}, v{MX}
    s_nop 1
    v_permlane32_swap_b32 v{MX}, v{MX+1}
    s_nop 1
    v_max_f32 v{MX}, v{MX}, v{MX+1}
    v_mul_f32 v{MX+2}, s64, v{MX}
    """)
    stamp(a, 3)
    if STAMP: a("s_waitcnt lgkmcnt(0)")
    NM = MX + 2
    def pv(j, pb, vbs, first=False):
        return [f"v_mfma_f32_32x32x16_bf16 {vr(O,16)}, {vr(vbs[s],4)}, {vr(pb+4*s,4)}, {'0' if (first and s == 0) else vr(O,16)}" for s in range(2)]
    torder = [1, 2, 3, 4, 5, 6, 7, 0]
    pend = None
    for n, j in enumerate(torder):
        sb = S + 16*j
        nxt = torder[n+1] if n+1 < 8 else 8
        vbn = [VB[2*((n+1) % 2)], VB[2*((n+1) % 2)+1]]
        for r in range(8):
            a(f"v_fma_f32 v{sb+r}, v{sb+r}, s64, -v{NM}")
        if pend:
            a("s_waitcnt lgkmcnt(4)")
            a(pend[0])
        for r in range(8):
            a(f"v_exp_f32 v{sb+r}, v{sb+r}")
            a(f"v_fma_f32 v{sb+8+r}, v{sb+8+r}, s64, -v{NM}")
        if pend:
            a(pend[1])
        for r in range(8, 16):
            a(f"v_exp_f32 v{sb+r}, v{sb+r}")
            if r % 2 == 1:
                k = (r - 8) // 2
                a(f"v_cvt_pk_bf16_f32 v{sb+k}, v{sb+2*k}, v{sb+2*k+1}")
        vread(nxt, 0, vbn[0])
        vread(nxt, 1, vbn[1])
        for k in range(4, 8):
            a(f"v_cvt_pk_bf16_f32 v{sb+k}, v{sb+2*k}, v{sb+2*k+1}")
        vbc = [VB[2*(n % 2)], VB[2*(n % 2)+1]]
        if j == 0:
            for k in range(8):
                a(f"v_bfi_b32 v{P8+k}, v{M+k}, 0, v{sb+k}")
                a(f"v_and_b32 v{sb+k}, v{M+k}, v{sb+k}")
        pend = pv(j, sb, vbc, first=(n == 0))
    a("s_nop 1")
    a("s_waitcnt vmcnt(0) lgkmcnt(0)")
    for s in pend: a(s)
    for s in pv(8, P8, [VB[0], VB[1]]): a(s)
    PK = S + 16
    for f in range(4):
        for e in range(2):
            a(f"ds_read_b64_tr_b16 {vr(PK+4*f+2*e,2)}, v{PKA} offset:{e*1024 + f*32}")
    a(f"""
    v_bfe_u32 v{T+4}, v0, 4, 1
    s_lshl_b32 s30, s19, 1
    v_add_u32 v{T+4}, s30, v{T+4}
    v_mul_u32_u24 v{T+4}, 20480, v{T+4}
    v_and_b32 v{T+5}, 15, v0
    v_lshl_add_u32 v{T+4}, v{T+5}, 4, v{T+4}
    v_lshrrev_b32 v{T+5}, 5, v0
    v_lshl_add_u32 v{T+5}, v{T+5}, 8, v{T+4}
    v_cmp_gt_u32 vcc, 32, v0
    v_mov_b32 v{T+6}, {BIG}
    s_lshr_b32 s30, s6, 2
    s_mul_i32 s30, s30, 5
    v_cndmask_b32 v{T+4}, v{T+6}, v{T+4}, vcc
    s_and_b32 s31, s6, 3
    s_add_u32 s31, s30, s31
    s_lshl_b32 s31, s31, 10
    s_lshl_b32 s28, s7, 9
    s_add_u32 s31, s31, s28
    s_add_u32 s31, s31, {WS_O}
    s_add_u32 s30, s30, 4
    s_lshl_b32 s30, s30, 10
    s_and_b32 s28, s4, 3
    s_lshl_b32 s28, s28, 8
    s_add_u32 s30, s30, s28
    s_bfe_u32 s28, s4, 0x10002
    s_lshl_b32 s28, s28, 3
    s_add_u32 s30, s30, s28
    s_add_u32 s30, s30, {WS_O}
    v_lshlrev_b32 v{T+7}, 4, v0
    """)
    for f in range(4):
        a(f"s_waitcnt lgkmcnt({6-2*f})")
        a(f"buffer_store_dwordx4 {vr(PK+4*f,4)}, v{T+7}, s[20:23], s78 offen")
        a("s_add_u32 s78, s78, s77")
    a(f"v_rcp_f32 v{T+8}, v{O+12}")
    a("s_nop 0")
    for r in range(12):
        a(f"v_mul_f32 v{O+r}, v{O+r}, v{T+8}")
    for k in range(6):
        a(f"v_cvt_pk_bf16_f32 v{T+12+k}, v{O+2*k}, v{O+2*k+1}")
    a(f"buffer_store_dwordx4 {vr(T+12,4)}, v{T+5}, s[20:23], s31 offen")
    a(f"buffer_store_dwordx2 {vr(T+16,2)}, v{T+4}, s[20:23], s30 offen")
    stamp(a, 4)
    if STAMP: a("s_mov_b32 s74, s8")
    stamp_dump(a, 1, 5, 12, 8, 8)
    tl_end(a, 1, 8)
    a.label("L_k2_done")
    a("s_endpgm")
    return kernel_desc("attn_kernel", 256, 80)
```

```python
from common import *

def gemm80(a, kind):
    K3 = kind == 'wo'
    name = "wo_kernel" if K3 else "dn_kernel"
    tag = "k3" if K3 else "k5"
    NKS = 20 if K3 else 54
    N = NKS // 2
    NS, SLOT = 8, 18432
    WP = WS_WOP if K3 else WS_WDP
    kernel_begin(a, name)
    a("s_cmp_ge_u32 s2, 256")
    a(f"s_cbranch_scc1 L_{tag}_done")
    code_prefetch(a, name, 108, 56)
    tl_start(a); stamp(a, 0)
    a(f"s_load_dwordx2 s[4:5], s[0:1], {0 if K3 else 56}")
    a("s_load_dwordx2 s[12:13], s[0:1], 72")
    a("""
    s_and_b32 s14, s2, 7
    s_lshr_b32 s15, s2, 3
    s_lshr_b32 s16, s14, 1
    s_lshl_b32 s16, s16, 3
    s_and_b32 s17, s15, 7
    s_add_u32 s16, s16, s17        ; mt
    s_and_b32 s17, s14, 1
    s_lshl_b32 s17, s17, 2
    s_lshr_b32 s18, s15, 3
    s_add_u32 s17, s17, s18        ; nt
    v_lshrrev_b32 v1, 6, v0
    v_and_b32 v0, 63, v0
    v_readfirstlane_b32 s19, v1
    """)
    VL = 2
    RW, RA = 3, 4
    E0, E1, E2 = 5, 7, 9
    T = 12
    XR = 24
    ACC = 32
    WF = 72
    AF = [92, 100]
    def epi_setup():
        srd(a, 28, 4, 5, 2621440, None)
        if K3:
            a(f"""
            v_and_b32 v{T}, 7, v0
            v_lshrrev_b32 v{T+1}, 3, v0
            s_lshl_b32 s14, s19, 3
            v_add_u32 v{T+2}, s14, v{T}
            v_mul_u32_u24 v{E0}, 336, v{T+2}
            v_lshl_add_u32 v{E0}, v{T+1}, 5, v{E0}    ; lds
            v_mul_u32_u24 v{E1}, 1280, v{T+2}
            v_lshl_add_u32 v{E1}, v{T+1}, 4, v{E1}    ; x
            v_lshlrev_b32 v{E2}, 9, v{T+1}
            v_lshl_add_u32 v{E2}, v{T}, 4, v{E2}      ; H
            v_lshlrev_b32 v{E2+1}, 3, v{T}            ; ST
            v_cmp_gt_u32 vcc, 16, v0
            v_mov_b32 v{T+3}, {BIG}
            s_mul_i32 s14, s16, {64*1280}
            s_mul_i32 s15, s17, 160
            s_add_u32 s14, s14, s15
            v_cndmask_b32 v{E1+1}, v{T+3}, v{E1}, vcc
            buffer_load_dwordx4 {vr(XR,4)}, v{E1}, s[28:31], s14 offen
            buffer_load_dwordx4 {vr(XR+4,4)}, v{E1+1}, s[28:31], s14 offen offset:128
            """)
        else:
            for j in range(2):
                a(f"""
                v_add_u32 v{T}, {64*j}, v0
                v_mul_u32_u24 v{T+1}, 6554, v{T}
                v_lshrrev_b32 v{T+1}, 16, v{T+1}          ; tok (0..7)
                v_mul_u32_u24 v{T+2}, 10, v{T+1}
                v_sub_u32 v{T+2}, v{T}, v{T+2}            ; chunk
                s_lshl_b32 s14, s19, 3
                v_add_u32 v{T+3}, s14, v{T+1}
                v_mul_u32_u24 v{E0+j}, 336, v{T+3}
                v_lshl_add_u32 v{E0+j}, v{T+2}, 5, v{E0+j}
                v_lshlrev_b32 v{E1+j}, 9, v{T+2}
                v_lshl_add_u32 v{E1+j}, v{T+1}, 4, v{E1+j}
                v_mul_u32_u24 v{E2+j}, 1280, v{T+3}
                v_lshl_add_u32 v{E2+j}, v{T+2}, 4, v{E2+j}
                """)
            a(f"""
            v_cmp_gt_u32 vcc, 16, v0
            v_mov_b32 v{T+3}, {BIG}
            s_lshl_b32 s14, s16, 1
            s_lshr_b32 s15, s19, 2
            v_cndmask_b32 v{E1+1}, v{T+3}, v{E1+1}, vcc
            v_cndmask_b32 v{E2+1}, v{T+3}, v{E2+1}, vcc
            s_add_u32 s14, s14, s15
            s_mul_i32 s14, s14, 40960
            s_mul_i32 s15, s17, 5120
            s_add_u32 s14, s14, s15
            s_and_b32 s15, s19, 3
            s_lshl_b32 s15, s15, 7
            s_add_u32 s14, s14, s15
            s_add_u32 s14, s14, {WS_H}
            buffer_load_dwordx4 {vr(XR,4)}, v{E1}, s[24:27], s14 offen
            buffer_load_dwordx4 {vr(XR+4,4)}, v{E1+1}, s[24:27], s14 offen
            """)
    a(f"v_lshlrev_b32 v{VL}, 4, v0")
    a("s_cmp_ge_u32 s19, 4")
    a(f"s_cbranch_scc1 L_{tag}_helper")
    a(f"""
    s_and_b32 s40, s19, 1          ; th
    s_lshr_b32 s41, s19, 1         ; kh
    s_mul_i32 s14, s41, 9216
    v_add_u32 v{RW}, s14, v{VL}
    s_lshl_b32 s15, s40, 11
    s_add_u32 s14, s14, s15
    s_add_u32 s14, s14, 5120
    v_add_u32 v{RA}, s14, v{VL}
    s_mov_b32 s32, 0
    s_mov_b32 s38, 0
    """)
    for i in range(40): a(f"v_mov_b32 v{ACC+i}, 0")
    a(f"s_branch L_{tag}_common")
    a.label(f"L_{tag}_helper")
    a(f"""
    s_and_b32 s40, s19, 1          ; ksl
    s_mul_i32 s34, s40, 9216
    s_waitcnt lgkmcnt(0)
    """)
    srd(a, 24, 12, 13, WS_END, None)
    a("s_cmp_ge_u32 s19, 6")
    a(f"s_cbranch_scc1 L_{tag}_helperA")
    a(f"""
    s_mul_i32 s42, s17, {5*NKS*1024}
    s_lshl_b32 s14, s40, 10
    s_add_u32 s42, s42, s14
    s_add_u32 s42, s42, {WP}
    s_add_u32 s35, s34, {SLOT*NS}
    """)
    for n in range(1, 5): a(f"s_add_u32 s{42+n}, s42, {n*NKS*1024}")
    P = int(os.environ.get('K35_P', 4))
    helper_loop(a, tag+"w", 5, N, NS, P, SLOT, [42,43,44,45,46], 2048, 34, VL, 24, 32, 33, epi_setup)
    a(f"s_branch L_{tag}_common2")
    a.label(f"L_{tag}_helperA")
    a("s_add_u32 s34, s34, 5120")
    a(f"s_add_u32 s35, s34, {SLOT*NS}")
    if K3:
        a(f"""
        s_mul_i32 s42, s16, {4*20480}
        s_lshl_b32 s14, s40, 10
        s_add_u32 s42, s42, s14
        s_add_u32 s42, s42, {WS_O}
        """)
        for n in range(1, 4): a(f"s_add_u32 s{42+n}, s42, {n*20480}")
        helper_loop(a, tag+"a", 4, N, NS, P, SLOT, [42,43,44,45], 2048, 34, VL, 24, 32, 33, epi_setup)
    else:
        a(f"""
        v_and_b32 v{T}, 15, v0
        v_lshrrev_b32 v{T+1}, 4, v0
        v_lshlrev_b32 v{T+1}, 9, v{T+1}
        v_lshl_add_u32 v{RW}, v{T}, 4, v{T+1}
        s_mul_i32 s42, s16, {2*110592}
        s_lshl_b32 s14, s40, 11
        s_add_u32 s42, s42, s14
        s_add_u32 s42, s42, {WS_G}
        """)
        for n in range(1, 4): a(f"s_add_u32 s{42+n}, s42, {(n>>1)*110592 + (n&1)*256}")
        helper_loop(a, tag+"a", 4, N, NS, P, SLOT, [42,43,44,45], 4096, 34, RW, 24, 32, 33, epi_setup)
    a(f"s_branch L_{tag}_common2")

    a.label(f"L_{tag}_common")
    a("s_waitcnt lgkmcnt(0)")
    srd(a, 24, 12, 13, WS_END, None)
    epi_setup()
    stamp(a, 1)
    a("s_barrier")
    stamp(a, 2)
    if STAMP: a("s_waitcnt lgkmcnt(0)")
    for tt in range(2): a(f"ds_read_b128 {vr(AF[0]+4*tt,4)}, v{RA} offset:{tt*1024}")
    for ft in range(5): a(f"ds_read_b128 {vr(WF+4*ft,4)}, v{RW} offset:{ft*1024}")
    a.label(f"L_{tag}_loop")
    for par in range(2):
        a(f"""
        s_add_u32 s39, s38, {SLOT}
        s_cmp_eq_u32 s39, {SLOT*NS}
        s_cselect_b32 s39, 0, s39
        s_sub_u32 s33, s39, s38
        s_mov_b32 s38, s39
        v_add_u32 v{RW}, s33, v{RW}
        v_add_u32 v{RA}, s33, v{RA}
        s_add_u32 s32, s32, 1
        s_barrier
        """)
        for tt in range(2): a(f"ds_read_b128 {vr(AF[1-par]+4*tt,4)}, v{RA} offset:{tt*1024}")
        for ft in range(5):
            a("s_waitcnt lgkmcnt(6)")
            for tt in range(2):
                ac = ACC + (ft*2+tt)*4
                a(f"v_mfma_f32_16x16x32_bf16 {vr(ac,4)}, {vr(WF+4*ft,4)}, {vr(AF[par]+4*tt,4)}, {vr(ac,4)}")
            a(f"ds_read_b128 {vr(WF+4*ft,4)}, v{RW} offset:{ft*1024}")
        a(f"s_cmp_lt_u32 s32, {N}")
        if par == 0: a(f"s_cbranch_scc0 L_{tag}_fin")
        else: a(f"s_cbranch_scc1 L_{tag}_loop")
    a.label(f"L_{tag}_fin")
    stamp(a, 3)
    a(f"""
    v_and_b32 v{T}, 15, v0
    s_lshl_b32 s14, s40, 5
    v_add_u32 v{T}, s14, v{T}
    v_mul_u32_u24 v{T}, 336, v{T}
    v_lshrrev_b32 v{T+1}, 4, v0
    v_lshl_add_u32 v{T}, v{T+1}, 4, v{T}
    s_mul_i32 s14, s41, 21504
    v_add_u32 v{T}, s14, v{T}
    s_waitcnt lgkmcnt(0)
    s_barrier                      ; E0
    """)
    for ft in range(5):
        for tt in range(2):
            a(f"ds_write_b128 v{T}, {vr(ACC+(ft*2+tt)*4,4)} offset:{tt*16*336 + ft*64}")
    a("s_waitcnt lgkmcnt(0)")
    a(f"s_branch L_{tag}_epi")
    a.label(f"L_{tag}_common2")
    a("s_waitcnt vmcnt(0)")
    a("s_barrier")
    a.label(f"L_{tag}_epi")
    a("s_barrier")
    PV = 32
    for j in range(2):
        for pp in range(2):
            for hf in range(2):
                if K3: a(f"ds_read_b128 {vr(PV+j*16+pp*8+hf*4,4)}, v{E0} offset:{pp*21504 + j*256 + hf*16}")
                else:  a(f"ds_read_b128 {vr(PV+j*16+pp*8+hf*4,4)}, v{E0+j} offset:{pp*21504 + hf*16}")
    HP = 64
    HF = 72
    a("s_mov_b32 s46, 0xffff0000")
    if K3:
        SUM, M2 = T+6, T+7
        a(f"""
        s_lshl_b32 s14, s16, 1
        s_lshr_b32 s15, s19, 2
        s_add_u32 s14, s14, s15                     ; T32
        s_mul_i32 s42, s14, 40960
        s_mul_i32 s15, s17, 5120
        s_add_u32 s42, s42, s15
        s_and_b32 s15, s19, 3
        s_lshl_b32 s18, s15, 7
        s_add_u32 s42, s42, s18
        s_add_u32 s42, s42, {WS_H}
        s_add_u32 s43, s42, 4096
        s_lshl_b32 s14, s14, 3
        s_add_u32 s14, s14, s17
        s_lshl_b32 s44, s14, 8
        s_lshl_b32 s15, s15, 6
        s_add_u32 s44, s44, s15
        s_add_u32 s44, s44, {WS_ST}
        v_mov_b32 v{SUM}, 0
        v_mov_b32 v{M2}, 0
        """)
    else:
        a(f"""
        s_mul_i32 s42, s16, {64*1280}
        s_mul_i32 s15, s17, 160
        s_add_u32 s42, s42, s15
        """)
    for j in range(2):
        a(f"s_waitcnt vmcnt({1-j}) lgkmcnt({4-4*j})" if j == 0 else "s_waitcnt vmcnt(1) lgkmcnt(0)")
        if K3 and j == 1: a("s_mov_b32 exec_lo, 0xffff\ns_mov_b32 exec_hi, 0")
        b = PV + j*16
        for k in range(4):
            a(f"v_pk_add_f32 {vr(b+2*k,2)}, {vr(b+2*k,2)}, {vr(b+8+2*k,2)}")
            a(f"v_lshlrev_b32 v{T+8}, 16, v{XR+j*4+k}")
            a(f"v_and_b32 v{T+9}, s46, v{XR+j*4+k}")
            a(f"v_pk_add_f32 {vr(b+2*k,2)}, {vr(b+2*k,2)}, {vr(T+8,2)}")
            a(f"v_cvt_pk_bf16_f32 v{HP+j*4+k}, v{b+2*k}, v{b+2*k+1}")
        if K3:
            a(f"buffer_store_dwordx4 {vr(HP+j*4,4)}, v{E2}, s[24:27], s{42+j} offen")
            for k in range(4):
                a(f"v_lshlrev_b32 v{HF+j*8+2*k}, 16, v{HP+j*4+k}")
                a(f"v_and_b32 v{HF+j*8+2*k+1}, s46, v{HP+j*4+k}")
                a(f"v_add_f32 v{SUM}, v{SUM}, v{HF+j*8+2*k}")
                a(f"v_add_f32 v{SUM}, v{SUM}, v{HF+j*8+2*k+1}")
        else:
            a(f"buffer_store_dwordx4 {vr(HP+j*4,4)}, v{E2+j}, s[28:31], s42 offen")
    if K3:
        a("s_mov_b64 exec, -1")
        def reduce8(v, t):
            a(f"""
            s_nop 1
            v_add_f32_dpp v{v}, v{v}, v{v} row_ror:8 row_mask:0xf bank_mask:0xf
            v_mov_b32 v{t}, v{v}
            s_nop 1
            v_permlane32_swap_b32 v{v}, v{t}
            s_nop 1
            v_add_f32 v{v}, v{v}, v{t}
            v_mov_b32 v{t}, v{v}
            s_nop 1
            v_permlane16_swap_b32 v{v}, v{t}
            s_nop 1
            v_add_f32 v{v}, v{v}, v{t}
            """)
        reduce8(SUM, T+8)
        a(f"v_mul_f32 v{T+9}, 0xbc4ccccd, v{SUM}")
        for j in range(2):
            if j == 1: a("s_mov_b32 exec_lo, 0xffff\ns_mov_b32 exec_hi, 0")
            for k in range(8):
                a(f"v_add_f32 v{HF+j*8+k}, v{HF+j*8+k}, v{T+9}")
                a(f"v_fmac_f32 v{M2}, v{HF+j*8+k}, v{HF+j*8+k}")
        a("s_mov_b64 exec, -1")
        reduce8(M2, T+8)
        a("s_mov_b32 exec_lo, 0xff\ns_mov_b32 exec_hi, 0")
        a(f"buffer_store_dwordx2 {vr(SUM,2)}, v{E2+1}, s[24:27], s44 offen")
    stamp(a, 4)
    stamp_dump(a, 2 if K3 else 4, 5, 12, 19, 8)
    tl_end(a, 2 if K3 else 4, 19)
    a.label(f"L_{tag}_done")
    a("s_endpgm")
    return kernel_desc(name, 112, 64)

def gen_k3(a): return gemm80(a, 'wo')
def gen_k5(a): return gemm80(a, 'dn')
```

```python
from common import *

def gen_k4(a):
    kernel_begin(a, "gu_kernel")
    a("s_cmp_ge_u32 s2, 256")
    a("s_cbranch_scc1 L_k4_done")
    code_prefetch(a, "gu_kernel", 90, 56)
    tl_start(a); stamp(a, 0)
    a("s_load_dwordx2 s[12:13], s[0:1], 72")
    a("""
    s_and_b32 s14, s2, 7
    s_lshr_b32 s15, s2, 3
    s_lshr_b32 s16, s14, 2
    s_lshl_b32 s16, s16, 3
    s_and_b32 s17, s15, 7
    s_add_u32 s16, s16, s17        ; mt
    s_and_b32 s17, s14, 3
    s_lshl_b32 s17, s17, 2
    s_lshr_b32 s18, s15, 3
    s_add_u32 s17, s17, s18        ; nt
    v_lshrrev_b32 v1, 6, v0
    v_and_b32 v0, 63, v0
    v_readfirstlane_b32 s19, v1
    """)
    VL, RW, RH = 2, 3, 4
    T = 6
    MB, KC = 20, 24
    WF = 28
    HF = [56, 60]
    E = 64
    ACC = 96
    N, NS, SLOT = 20, 7, 22528
    a(f"v_lshlrev_b32 v{VL}, 4, v0")
    a("s_cmp_ge_u32 s19, 4")
    a("s_cbranch_scc1 L_k4_helper")
    a(f"""
    v_and_b32 v{T}, 31, v0
    v_lshrrev_b32 v{T+1}, 5, v0
    v_lshlrev_b32 v{T+1}, 10, v{T+1}
    v_lshl_add_u32 v{T+1}, v{T}, 3, v{T+1}
    v_lshlrev_b32 v{T+2}, 3, v{T}
    s_lshl_b32 s14, s16, 2
    s_add_u32 s42, s14, s19                    ; T32
    s_lshl_b32 s43, s42, 11
    s_add_u32 s43, s43, {WS_ST}
    s_mul_i32 s44, s17, 1792
    s_add_u32 s44, s44, {WS_CS}
    s_lshl_b32 s14, s19, 10
    s_add_u32 s14, s14, 7168
    v_mov_b32 v{RW}, v{VL}
    v_add_u32 v{RH}, s14, v{VL}
    s_mov_b32 s32, 0
    s_mov_b32 s38, 0
    s_waitcnt lgkmcnt(0)
    """)
    srd(a, 24, 12, 13, WS_END, None)
    ST = T + 4
    for i in range(4):
        a(f"buffer_load_dwordx2 {vr(ST+2*i,2)}, v{T+1}, s[24:27], s43 offen offset:{i*256}")
    for ft in range(7):
        a(f"buffer_load_dwordx2 {vr(WF+4*ft,2)}, v{T+2}, s[24:27], s44 offen offset:{ft*256}")
    for ft in range(7):
        a(f"v_mov_b32 v{WF+4*ft+2}, 0")
        a(f"v_mov_b32 v{WF+4*ft+3}, 0")
    a("s_waitcnt vmcnt(7)")
    a(f"""
    v_add_f32 v{T}, v{ST}, v{ST+2}
    v_add_f32 v{T+1}, v{ST+4}, v{ST+6}
    v_add_f32 v{T}, v{T}, v{T+1}
    v_mov_b32 v{T+1}, v{T}
    v_add_f32 v{T+2}, v{ST+1}, v{ST+3}
    v_add_f32 v{T+3}, v{ST+5}, v{ST+7}
    v_permlane32_swap_b32 v{T}, v{T+1}
    v_add_f32 v{T+2}, v{T+2}, v{T+3}
    s_nop 0
    v_add_f32 v{T}, v{T}, v{T+1}
    v_mul_f32 v{T}, {fbits(1/640):#x}, v{T}
    s_mov_b32 s14, {fbits(1/80):#x}
    v_mov_b32 v{T+3}, 0
    """)
    for i in range(4):
        a(f"v_fma_f32 v{T+1}, v{ST+2*i}, s14, -v{T}")
        a(f"v_fmac_f32 v{T+3}, v{T+1}, v{T+1}")
    a(f"""
    v_mov_b32 v{T+1}, 0x42a00000
    v_fmac_f32 v{T+2}, v{T+1}, v{T+3}
    v_mov_b32 v{T+1}, v{T+2}
    s_nop 1
    v_permlane32_swap_b32 v{T+2}, v{T+1}
    s_nop 1
    v_add_f32 v{T+2}, v{T+2}, v{T+1}
    v_mul_f32 v{T+2}, {fbits(1/640):#x}, v{T+2}
    """)
    ln_finish(a, T, T+2, T+1)
    c1 = -2.0 * 0.7978845608028654 * 1.4426950408889634
    a(f"""
    v_rcp_f32 v{T+3}, v{T+2}
    v_mul_f32 v{KC+2}, v{T+2}, v{T+2}
    v_cvt_pk_bf16_f32 v{MB}, v{T}, v{T}
    v_mul_f32 v{KC}, {fbits(c1):#x}, v{T+3}
    v_mul_f32 v{T+1}, v{T+3}, v{T+3}
    v_mul_f32 v{T+1}, {fbits(0.044715):#x}, v{T+1}
    v_mul_f32 v{KC+1}, v{KC}, v{T+1}
    v_cvt_pk_bf16_f32 v{MB+1}, v{T}, 0
    v_cmp_gt_u32 vcc, 32, v0
    v_mov_b32 v{MB+2}, 0
    v_mov_b32 v{MB+3}, 0
    v_cndmask_b32 v{MB}, 0, v{MB}, vcc
    v_cndmask_b32 v{MB+1}, 0, v{MB+1}, vcc
    s_waitcnt vmcnt(0)
    s_nop 0
    """)
    for ft in range(7):
        a(f"v_mfma_f32_32x32x16_bf16 {vr(ACC+16*ft,16)}, {vr(WF+4*ft,4)}, {vr(MB,4)}, 0")
    stamp(a, 1)
    a("s_barrier")
    stamp(a, 2)
    if STAMP: a("s_waitcnt lgkmcnt(0)")
    a(f"ds_read_b128 {vr(HF[0],4)}, v{RH}")
    for ft in range(7): a(f"ds_read_b128 {vr(WF+4*ft,4)}, v{RW} offset:{ft*1024}")
    a.label("L_k4_loop")
    for ks in range(2):
        no = 11264 if ks == 0 else 0
        if ks == 1:
            a("s_barrier")
        a(f"ds_read_b128 {vr(HF[1-ks],4)}, v{RH} offset:{no}")
        for ft in range(7):
            a("s_waitcnt lgkmcnt(7)")
            a(f"v_mfma_f32_32x32x16_bf16 {vr(ACC+16*ft,16)}, {vr(WF+4*ft,4)}, {vr(HF[ks],4)}, {vr(ACC+16*ft,16)}")
            a(f"ds_read_b128 {vr(WF+4*ft,4)}, v{RW} offset:{no + ft*1024}")
            if ks == 0 and ft == 1:
                a(f"""
                s_add_u32 s39, s38, {SLOT}
                s_cmp_eq_u32 s39, {SLOT*NS}
                s_cselect_b32 s39, 0, s39
                """)
            if ks == 0 and ft == 2:
                a(f"""
                s_sub_u32 s33, s39, s38
                s_mov_b32 s38, s39
                v_add_u32 v{RH}, s33, v{RH}
                """)
            if ks == 0 and ft == 6:
                a(f"v_add_u32 v{RW}, s33, v{RW}")
            if ks == 1 and ft == 5:
                a("s_add_u32 s32, s32, 1")
                a(f"s_cmp_lt_u32 s32, {N}")
    a("s_cbranch_scc1 L_k4_loop")
    stamp(a, 3)
    a(f"""
    s_mul_i32 s44, s42, 110592
    s_add_u32 s44, s44, {WS_G}
    s_mul_i32 s45, s17, 7
    s_lshl_b32 s14, s45, 10
    s_add_u32 s44, s44, s14
    """)
    for ft in range(7):
        ac = ACC + 16*ft
        pb = E + 16 + (ft % 2) * 4
        for k in range(4):
            g = ac + 2*k; u = ac + 8 + 2*k; t = E + 2*k
            a(f"v_pk_mul_f32 {vr(t,2)}, {vr(g,2)}, {vr(g,2)}")
            a(f"v_pk_mul_f32 {vr(u,2)}, {vr(u,2)}, {vr(g,2)}")
            a(f"v_pk_fma_f32 {vr(t,2)}, {vr(t,2)}, {vr(KC,2)}, {vr(KC,2)} op_sel:[0,1,0] op_sel_hi:[1,1,0]")
            a(f"v_pk_mul_f32 {vr(t,2)}, {vr(t,2)}, {vr(g,2)}")
        for k in range(8):
            a(f"v_exp_f32 v{E+k}, v{E+k}")
        for k in range(4):
            t = E + 2*k
            a(f"v_pk_fma_f32 {vr(t,2)}, {vr(t,2)}, {vr(KC+2,2)}, {vr(KC+2,2)} op_sel_hi:[1,0,0]")
        for k in range(8):
            a(f"v_rcp_f32 v{E+k}, v{E+k}")
        a(f"s_add_u32 s14, s45, {ft}")
        a(f"s_cmp_lt_u32 s14, 108")
        a(f"s_cselect_b32 s14, s44, {BIG}")
        for k in range(4):
            u = ac + 8 + 2*k; t = E + 2*k
            a(f"v_pk_mul_f32 {vr(u,2)}, {vr(u,2)}, {vr(t,2)}")
        for k in range(4):
            u = ac + 8 + 2*k
            a(f"v_cvt_pk_bf16_f32 v{pb+k}, v{u}, v{u+1}")
        if ft >= 4:
            a(f"s_add_u32 s14, s14, 4096")
        a(f"buffer_store_dwordx4 {vr(pb,4)}, v{VL}, s[24:27], s14 offen offset:{(ft%4)*1024}")
    stamp(a, 4)
    stamp_dump(a, 3, 5, 12, 19, 8)
    tl_end(a, 3, 19)
    a("s_endpgm")
    a.label("L_k4_helper")
    a(f"""
    s_and_b32 s40, s19, 1          ; ksl
    s_mul_i32 s34, s40, 11264
    s_lshl_b32 s14, s40, 10
    s_waitcnt lgkmcnt(0)
    """)
    srd(a, 24, 12, 13, WS_END, None)
    P = int(os.environ.get('K4_P', 3))
    a("s_cmp_ge_u32 s19, 6")
    a("s_cbranch_scc1 L_k4_helperH")
    a(f"""
    s_mul_i32 s42, s17, {7*40*1024}
    s_add_u32 s42, s42, s14
    s_add_u32 s42, s42, {WS_GUP}
    s_add_u32 s35, s34, {SLOT*NS}
    s_mul_i32 s15, s17, 7
    """)
    for n in range(1, 7):
        a(f"s_add_u32 s{42+n}, s42, {n*40*1024}")
        a(f"s_cmp_lt_u32 s15, {108-n}")
        a(f"s_cselect_b32 s{42+n}, s{42+n}, s42")
    helper_loop(a, "k4w", 7, N, NS, P, SLOT, [42,43,44,45,46,47,48], 2048, 34, VL, 24, 32, 33)
    a("s_endpgm")
    a.label("L_k4_helperH")
    a(f"""
    s_add_u32 s34, s34, 7168
    s_add_u32 s35, s34, {SLOT*NS}
    s_mul_i32 s42, s16, {4*40960}
    s_add_u32 s42, s42, s14
    s_add_u32 s42, s42, {WS_H}
    """)
    for n in range(1, 4): a(f"s_add_u32 s{42+n}, s42, {n*40960}")
    helper_loop(a, "k4h", 4, N, NS, P, SLOT, [42,43,44,45], 2048, 34, VL, 24, 32, 33)
    a.label("L_k4_done")
    a("s_endpgm")
    return kernel_desc("gu_kernel", 208, 64)
```

```python
import sys
from common import *
from k1 import gen_k1
from k2 import gen_k2
from k35 import gen_k3, gen_k5
from k4 import gen_k4

KERNELS = [("qkv_kernel", gen_k1, 256, 512, 163840), ("attn_kernel", gen_k2, 256, 512, 98304),
           ("wo_kernel", gen_k3, 256, 512, 147456), ("gu_kernel", gen_k4, 256, 512, 157696),
           ("dn_kernel", gen_k5, 256, 512, 147456)]

def main(out):
    a = Asm()
    hdr = open('sequential_preLN__sliding_block__geglu_ffn__prompt.s.ref').read().split('\n')
    for l in hdr:
        if l.startswith(';') and '@launch' not in l and 'Override' not in l and 'grid=ceil' not in l:
            a.raw(l)
    for (n, g, grid, blk, lds) in KERNELS:
        a.raw(f"; @launch kernel={n} grid=({grid},1,1) block=({blk},1,1) lds={lds}")
    a.raw('.amdgcn_target "amdgcn-amd-amdhsa--gfx950"\n.text')
    descs = []
    for (n, g, grid, blk, lds) in KERNELS:
        descs.append(g(a))
    a.raw('.section .rodata,"a"')
    for d in descs: a.raw(d)
    open(out, 'w').write(a.text())

if __name__ == '__main__':
    main(sys.argv[1] if len(sys.argv) > 1 else 'k.s')
```

```python
import sys, os, struct
from asmlib import *

WS_QKV = 0
WS_O   = 0x800000
WS_H   = 0xB00000
WS_ST  = 0xE00000
WS_CS  = 0xE40000
WS_G   = 0x1000000
WS_GUP = 0x1800000
WS_WDP = 0x1D00000
WS_WOP = 0x1F80000
WS_END = 0x2080000
BIG = 0x40000000

def fbits(x): return struct.unpack('<I', struct.pack('<f', x))[0]

def rnd_bf16(a, d, s):
    a(f"v_cvt_pk_bf16_f32 v{d}, v{s}, v{s}")
    a(f"v_lshlrev_b32 v{d}, 16, v{d}")

def ln_finish(a, mean, var, t):
    rnd_bf16(a, mean, mean)
    rnd_bf16(a, var, var)
    a(f"v_sub_f32 v{mean}, 0, v{mean}")
    a(f"v_add_f32 v{var}, 0x3727c5ac, v{var}")
    rnd_bf16(a, var, var)
    a(f"v_sqrt_f32 v{var}, v{var}")
    a("s_nop 0")
    rnd_bf16(a, var, var)

def helper_loop(a, tag, nitems, N, NS, P, SLOT, soff, adv, slds, voff, srdreg, scnt, stmp, after_prologue=None):
    def issue():
        for n in range(nitems):
            a(f"s_add_u32 m0, s{slds}, {n*1024}")
            if n == 0:
                a(f"s_add_u32 s{scnt}, s{scnt}, 1")
            else:
                a(f"s_add_u32 s{soff[n-1]}, s{soff[n-1]}, s{stmp}")
            a(f"buffer_load_dwordx4 v{voff}, s[{srdreg}:{srdreg+3}], s{soff[n]} offen lds")
            if n == 0:
                a(f"s_cmp_eq_u32 s{scnt}, {N}")
                a(f"s_cselect_b32 s{stmp}, {BIG}, {adv}")
        a(f"s_add_u32 s{soff[-1]}, s{soff[-1]}, s{stmp}")
        a(f"s_add_u32 s{slds}, s{slds}, {SLOT}")
        a(f"s_cmp_ge_u32 s{slds}, s{slds+1}")
        a(f"s_cselect_b32 s{stmp}, {SLOT*NS}, 0")
        a(f"s_sub_u32 s{slds}, s{slds}, s{stmp}")
    a(f"s_mov_b32 s{scnt}, 0")
    issued = 0
    for s in range(P):
        issue(); issued += 1
    if after_prologue: after_prologue()
    a(f"s_waitcnt vmcnt({(issued-1)*nitems})")
    a("s_barrier")
    i = 0
    while True:
        allowed = i + NS - 1
        k = min(2, allowed - issued)
        if k == 1: break
        for _ in range(k):
            issue(); issued += 1
        a(f"s_waitcnt vmcnt({(issued-(i+2))*nitems})")
        a("s_barrier")
        i += 1
    lead = issued + 1 - (i + 2)
    assert lead*nitems <= 63 and i < N
    a.label(f"L_{tag}_hl")
    issue()
    a(f"s_cmp_lt_u32 s{scnt}, {N + lead + 1}")
    a(f"s_waitcnt vmcnt({lead*nitems})")
    a("s_barrier")
    a(f"s_cbranch_scc1 L_{tag}_hl")


def code_prefetch(a, label, vtmp, stmp, nbytes=16384):
    if os.environ.get('NOPF'): return
    per = nbytes // 32
    assert per == 512
    a(f"s_getpc_b64 s[{stmp}:{stmp+1}]")
    a.label(f"L_pc_{label}")
    a(f"s_sub_u32 s{stmp}, s{stmp}, L_pc_{label}-{label}")
    a(f"s_subb_u32 s{stmp+1}, s{stmp+1}, 0")
    a(f"s_lshr_b32 s3, s2, 3")
    a(f"s_lshl_b32 s3, s3, 9")
    a(f"v_and_b32 v{vtmp}, 63, v0")
    a(f"v_lshl_add_u32 v{vtmp}, v{vtmp}, 3, s3")
    a(f"v_cmp_gt_u32 vcc, 64, v0")
    a(f"s_and_saveexec_b64 s[{stmp+2}:{stmp+3}], vcc")
    a(f"s_cbranch_execz L_pf_{label}")
    a(f"global_load_dwordx2 v[{vtmp+2}:{vtmp+3}], v{vtmp}, s[{stmp}:{stmp+1}]")
    a.label(f"L_pf_{label}")
    a(f"s_mov_b64 exec, s[{stmp+2}:{stmp+3}]")
```

```python
import sys
from common import *
from k1 import gen_k1
from k2 import gen_k2
from k35 import gen_k3, gen_k5
from k4 import gen_k4

KERNELS = [("qkv_kernel", gen_k1, 256, 512, 163840), ("attn_kernel", gen_k2, 256, 512, 98304),
           ("wo_kernel", gen_k3, 256, 512, 147456), ("gu_kernel", gen_k4, 256, 512, 157696),
           ("dn_kernel", gen_k5, 256, 512, 147456)]

def main(out):
    a = Asm()
    hdr = open('sequential_preLN__sliding_block__geglu_ffn__prompt.s.ref').read().split('\n')
    for l in hdr:
        if l.startswith(';') and '@launch' not in l and 'Override' not in l and 'grid=ceil' not in l:
            a.raw(l)
    for (n, g, grid, blk, lds) in KERNELS:
        a.raw(f"; @launch kernel={n} grid=({grid},1,1) block=({blk},1,1) lds={lds}")
    a.raw('.amdgcn_target "amdgcn-amd-amdhsa--gfx950"\n.text')
    descs = []
    for (n, g, grid, blk, lds) in KERNELS:
        descs.append(g(a))
    a.raw(".fill 4096, 4, 0xBF800000")
    a.raw('.section .rodata,"a"')
    for d in descs: a.raw(d)
    import re
    t = a.text()
    if not os.environ.get('NOSC1'):
        t = re.sub(r"(buffer_store_dword\S* [^\n]*)", lambda m: m.group(1) + " sc1", t)
    open(out, 'w').write(t)

if __name__ == '__main__':
    main(sys.argv[1] if len(sys.argv) > 1 else 'k.s')
```
